```python
import torch

def _softmax(x, axis=-1):
    return torch.softmax(x, dim=axis)
def _gelu(x):
    return torch.nn.functional.gelu(x, approximate="tanh")
def _silu(x):
    return torch.nn.functional.silu(x)
def _sigmoid(x):
    return torch.sigmoid(x)
def _layernorm(x, axis=-1, eps=1e-5):
    m = x.mean(dim=axis, keepdim=True)
    v = x.var(dim=axis, keepdim=True, unbiased=False)
    return (x - m) / torch.sqrt(v + eps)
def _scatter_add(tgt, idx, src, axis=0):
    return tgt.clone().index_add_(axis, idx, src)
def _segment_sum(src, seg, n):
    out = torch.zeros((n,) + src.shape[1:], dtype=src.dtype)
    return out.index_add_(0, seg, src)
def _pad(x, pw):
    flat = tuple(v for pair in reversed(pw) for v in pair)
    return torch.nn.functional.pad(x, flat)

kernel_name = 'sequential_preLN__mha_block_cached__glu_gated_swiglu__decode'

def setup_inputs():

    _w = (lambda a: (lambda t: t.to(torch.bfloat16) if t.is_floating_point() else t)(torch.as_tensor(a)))
    def _A_setup():
        B, Sq, D = 4, 1, 448
        H, Sk, Dh = 16, 4096, 256
        return {
            "x": _w((lambda *s: torch.randn(*s, dtype=torch.bfloat16) * 0.05)(B, Sq, D)),
            "k_cache": _w((lambda *s: torch.randn(*s, dtype=torch.bfloat16) * 1.6)(B, H, Sk, Dh)),
            "v_cache": _w((lambda *s: torch.randn(*s, dtype=torch.bfloat16) * 0.8)(B, H, Sk, Dh)),
            "wq": _w((lambda *s: torch.randn(*s, dtype=torch.bfloat16) * 1.6)(D, H * Dh) * (D ** -0.5)),
            "wo": _w((lambda *s: torch.randn(*s, dtype=torch.bfloat16) * 0.8)(H * Dh, D) * ((H * Dh) ** -0.5)),
        }
    _A_in = _A_setup()

    def _B_setup():
        B, S, D, F = 4, 1, 448, 1792
        return {
            "x": _w((lambda *s: torch.randn(*s, dtype=torch.bfloat16) * 0.05)(B, S, D)),
            "w1": _w((lambda *s: torch.randn(*s, dtype=torch.bfloat16) * 0.4)(D, F) * (2.0 / D) ** 0.5),
            "w3": _w((lambda *s: torch.randn(*s, dtype=torch.bfloat16) * 0.4)(D, F) * (2.0 / D) ** 0.5),
            "w2": _w((lambda *s: torch.randn(*s, dtype=torch.bfloat16) * 0.4)(F, D) * (2.0 / F) ** 0.5),
        }
    _B_in = _B_setup()

    return {
        "A_x": _A_in["x"],
        "A_k_cache": _A_in["k_cache"],
        "A_v_cache": _A_in["v_cache"],
        "A_wq": _A_in["wq"],
        "A_wo": _A_in["wo"],
        "B_x": _B_in["x"],
        "B_w1": _B_in["w1"],
        "B_w3": _B_in["w3"],
        "B_w2": _B_in["w2"],
    }

def reference(A_x, A_k_cache, A_v_cache, A_wq, A_wo, B_x, B_w1, B_w3, B_w2):
    def _A_ref(x, k_cache, v_cache, wq, wo):
        B, Sq, D = x.shape
        H, Dh = 16, 256
        q = (lambda x, *d: x.permute(*d))((x @ wq).reshape(B, Sq, H, Dh), 0, 2, 1, 3)
        scores = torch.einsum("bhqd,bhkd->bhqk", q, k_cache) * (Dh ** -0.5)
        p = _softmax(scores, axis=-1)
        o = torch.einsum("bhqk,bhkd->bhqd", p, v_cache)
        return (lambda x, *d: x.permute(*d))(o, 0, 2, 1, 3).reshape(B, Sq, H * Dh) @ wo

    def _B_ref(x, w1, w3, w2):
        gate = torch.einsum("bsd,df->bsf", x, w1)
        up = torch.einsum("bsd,df->bsf", x, w3)
        h = _silu(gate) * up
        out = torch.einsum("bsf,fd->bsd", h, w2)
        return out

    x = A_x
    h = x + _A_ref(_layernorm(x, axis=-1), A_k_cache, A_v_cache, A_wq, A_wo)
    h2 = h + _B_ref(_layernorm(h, axis=-1), B_w1, B_w3, B_w2)
    return h2
```

```python
import re

TRANS = ("v_exp_f32", "v_log_f32", "v_rcp_f32", "v_rsq_f32", "v_sqrt_f32", "v_sin_f32", "v_cos_f32")

def regs(tok):
    tok = tok.strip()
    tok = tok.lstrip("-").strip("|")
    m = re.fullmatch(r"([vsa])\[(\d+):(\d+)\]", tok)
    if m: return {(m.group(1), i) for i in range(int(m.group(2)), int(m.group(3)) + 1)}
    m = re.fullmatch(r"([vsa])(\d+)", tok)
    if m: return {(m.group(1), int(m.group(2)))}
    if tok == "vcc": return {("s", 106), ("s", 107)}
    if tok == "vcc_lo": return {("s", 106)}
    if tok == "vcc_hi": return {("s", 107)}
    if tok == "exec": return {("s", 126), ("s", 127)}
    if tok == "m0": return {("s", 124)}
    return set()

class Ins:
    def __init__(self, text):
        self.text = text
        t = text.split(";")[0].strip()
        self.label = t.endswith(":")
        parts = t.split(None, 1)
        self.op = parts[0] if parts else ""
        rest = parts[1] if len(parts) > 1 else ""
        ops = [o.strip() for o in rest.split(",")]
        mods = ""
        if ops:
            sp = ops[-1].split(None, 1)
            if len(sp) > 1: ops[-1], mods = sp[0], sp[1]
        self.raw = t
        self.ops = ops
        op = self.op
        self.valu = op.startswith("v_")
        self.mfma = op.startswith("v_mfma")
        self.dot = op.startswith("v_dot")
        self.trans = op.replace("_e32", "").replace("_e64", "") in TRANS
        self.dpp = bool(re.search(r"quad_perm|row_|wave_", t)) or op.endswith("_dpp")
        self.vmem = op.startswith(("buffer_", "global_", "flat_"))
        self.ds = op.startswith("ds_")
        self.salu = op.startswith("s_")
        self.perml = op.startswith("v_permlane")
        self.rdlane = op.startswith(("v_readlane", "v_readfirstlane"))
        toks = []
        for o in rest.split(","):
            o = o.strip()
            first = o.split(None, 1)[0] if o else ""
            toks.append(first)
            if len(o.split(None, 1)) > 1: break
        self.toks = toks
        R = [regs(x) for x in toks]
        self.wr = set(); self.rd = set(); self.srcC = set(); self.srcAB = set(); self.stdata = set()
        if self.valu:
            self.wr = set(R[0])
            for r in R[1:]: self.rd |= r
            if op.startswith(("v_dot2c", "v_fmac", "v_mac", "v_pk_fmac")): self.rd |= R[0]
            if self.perml and "swap" in op:
                self.wr |= R[1]; self.rd |= R[0]
            if "_co_" in op and len(R) > 1: self.wr |= R[1]
            if op.startswith("v_cmpx"): raise ValueError("no cmpx")
            if self.mfma:
                self.srcAB = R[1] | R[2]; self.srcC = set(R[3])
            if self.dot:
                if op.startswith("v_dot2c"): self.srcC = set(R[0]); self.srcAB = R[1] | R[2]
                else: self.srcC = set(R[3]); self.srcAB = R[1] | R[2]
            if self.dpp and not op.startswith("v_mov"): pass
            if self.dpp: self.rd |= R[0] if "bound_ctrl" not in t and op.startswith("v_mov") else set()
        elif self.vmem:
            if "load" in op:
                self.wr = set(R[0])
                for r in R[1:]: self.rd |= r
            elif op.startswith("global_"):
                if "atomic" in op and ("sc0" in t):
                    self.wr = set(R[0])
                    for r in R[1:]: self.rd |= r
                else:
                    for r in R: self.rd |= r
                    self.stdata = set(R[1])
            else:
                for r in R: self.rd |= r
                self.stdata = set(R[0])
                if "atomic" in op and "sc0" in t: self.wr = set(R[0])
            if not re.search(r"x3|x4", op): self.stdata = set()
        elif self.ds:
            if "read" in op or "rtn" in op or "permute" in op or "swizzle" in op:
                self.wr = set(R[0])
                for r in R[1:]: self.rd |= r
            else:
                for r in R: self.rd |= r
        elif self.salu:
            if R: self.wr = set(R[0])
            for r in R[1:]: self.rd |= r
    def states(self):
        if self.op == "s_nop": return int(self.toks[0]) + 1
        if self.label or self.op.startswith("."): return 0
        return 1

def need(p, c):
    n = 0
    pv = {r for r in p.wr if r[0] in "va"}
    ps = {r for r in p.wr if r[0] == "s"}
    if p.mfma:
        if c.mfma:
            if pv & c.srcAB: n = max(n, 8)
            if pv & c.srcC and pv != c.srcC: n = max(n, 6)
        elif (c.valu or c.vmem or c.ds) and (pv & (c.rd | c.wr)): n = max(n, 8)
        if c.valu and not c.mfma and (p.srcC & c.wr): n = max(n, 3)
        return n
    if p.valu:
        if p.dot:
            if c.dot and c.op == p.op:
                if pv & c.srcAB: n = max(n, 3)
            elif (c.valu or c.vmem or c.ds) and (pv & (c.rd | c.wr)): n = max(n, 3)
        if c.valu:
            if c.dpp and (pv & c.rd): n = max(n, 2)
            if c.rdlane and (pv & c.rd): n = max(n, 1)
            if c.perml and (pv & c.rd): n = max(n, 2)
            if c.mfma and (pv & c.rd): n = max(n, 2)
            if p.trans and not c.trans and (pv & c.rd): n = max(n, 1)
            if ps & c.rd: n = max(n, 4 if c.op.startswith(("v_readlane", "v_writelane")) else 2)
            if ("op_sel" in p.raw or "sdwa" in p.raw or "dst_sel" in p.raw) and (pv & (c.rd | c.wr)): n = max(n, 1)
        if c.vmem and (ps & c.rd): n = max(n, 5)
        if c.salu and (ps & c.rd): n = max(n, 0)
    if p.vmem and p.stdata and (p.stdata & c.wr): n = max(n, 2)
    return n

class Asm:
    def __init__(self):
        self.L = []
    def __call__(self, s):
        for line in s.split("\n"):
            line = line.strip()
            if line: self.L.append(line)
    def finish(self):
        out = []; hist = []
        for line in self.L:
            if line.startswith(";") or line.startswith("."):
                out.append(line); continue
            ins = Ins(line)
            if ins.label:
                out.append(line); continue
            dist = 0; pad = 0
            for p in reversed(hist):
                nd = need(p, ins)
                if nd - dist > pad: pad = nd - dist
                dist += p.states()
                if dist >= 12: break
            if pad > 0:
                nop = Ins(f"s_nop {pad-1}")
                out.append(f"    s_nop {pad-1}"); hist.append(nop)
            out.append("    " + line); hist.append(ins)
            if len(hist) > 40: hist = hist[-20:]
        return "\n".join(out) + "\n"
```

```python
import sys, os
sys.path.insert(0, os.path.dirname(os.path.abspath(__file__)))
from asmlib import Asm

NAME = "sequential_preLN__mha_block_cached__glu_gated_swiglu__decode_kernel"
HDR = open(os.path.join(os.path.dirname(os.path.abspath(__file__)), "header.txt")).read()

WS_EP, WS_QX, WS_SX, WS_YA, WS_ZX, WS_TS = 0x0, 0x10000, 0x40000, 0x100000, 0x200000, 0x300000
WS_SIZE = 0x400000
L_P, L_Q, L_QACC, L_OACC, L_GU, L_CNT, L_XN, L_HN, L_H = 0x0, 0x4000, 0x4200, 0x4300, 0x4400, 0x4500, 0x4800, 0x5000, 0x5800
LDS_SIZE = 0x6000
SPIN = 200000

def gen(NG=13, D=8, stamps=False, wpol="", perload=True):
    A = Asm()
    nstamp = [0]
    def stamp(i):
        if stamps:
            A(f"s_memrealtime s[{84+2*i}:{85+2*i}]")
    def srd(d, base, off, size):
        if off is None:
            A(f"s_mov_b32 s{d}, s{base}"); A(f"s_mov_b32 s{d+1}, s{base+1}")
        else:
            A(f"s_add_u32 s{d}, s{base}, {off}"); A(f"s_addc_u32 s{d+1}, s{base+1}, 0")
        A(f"s_mov_b32 s{d+2}, {size}"); A(f"s_mov_b32 s{d+3}, 0x20000")
    def write_stamps():
        if not stamps: return
        A("s_waitcnt lgkmcnt(0)")
        A("s_mov_b64 exec, 1")
        A("s_lshl_b32 s60, s2, 3"); A("s_add_u32 s60, s60, s3"); A("s_lshl_b32 s60, s60, 6"); A(f"s_add_u32 s60, s60, {WS_TS}")
        A("v_mov_b32 v2, 0")
        for i in range(8):
            A(f"v_mov_b32 v{8+i}, s{84+2*i}")
        A("s_getreg_b32 s61, hwreg(HW_REG_XCC_ID)")
        A("v_mov_b32 v16, s61")
        A("buffer_store_dwordx4 v[8:11], v2, s[12:15], s60 offen")
        A("buffer_store_dwordx4 v[12:15], v2, s[12:15], s60 offen offset:16")
        A("buffer_store_dword v16, v2, s[12:15], s60 offen offset:32")
        A("s_waitcnt vmcnt(0)")

    A(f"{NAME}:")
    A("s_cmp_ge_u32 s2, 256")
    A("s_cbranch_scc1 L_exit")
    if stamps:
        for i in range(8): A(f"s_mov_b32 s{84+2*i}, 0")
    stamp(0)
    A("s_load_dwordx16 s[16:31], s[0:1], 0")
    A("s_load_dwordx8 s[32:39], s[0:1], 64")
    A("v_lshrrev_b32 v2, 6, v0")
    A("v_and_b32 v1, 63, v0")
    A("v_readfirstlane_b32 s3, v2")
    A("s_and_b32 s4, s2, 1"); A("s_lshr_b32 s9, s2, 1"); A("s_and_b32 s10, s9, 2"); A("s_or_b32 s4, s4, s10")
    A("s_and_b32 s9, s9, 1")
    A("s_lshr_b32 s10, s2, 3"); A("s_and_b32 s5, s10, 3"); A("s_lshr_b32 s10, s10, 2")
    A("s_lshl_b32 s6, s10, 1"); A("s_or_b32 s6, s6, s9")
    A("s_lshl_b32 s7, s5, 4"); A("s_add_u32 s7, s7, s6")
    A("s_and_b32 s8, s2, 7"); A("s_mul_i32 s8, s8, 7"); A("s_add_u32 s8, s8, s10")
    A("s_cmp_eq_u32 s10, 7"); A("s_cselect_b32 s8, 64, s8")
    A("v_lshrrev_b32 v3, 3, v1"); A("v_and_b32 v4, 7, v1")
    A("s_waitcnt lgkmcnt(0)")
    srd(12, 38, None, WS_SIZE)
    A("s_cmp_ge_u32 s3, 4")
    A("s_cbranch_scc1 L_service")

    RING = 256 - NG * 16
    Q = RING - 16
    assert Q >= 24
    A("s_lshl_b32 s9, s7, 21"); A("s_lshl_b32 s10, s4, 19"); A("s_add_u32 s10, s10, s9")
    srd(40, 18, "s10", 512 << 10)
    A("s_lshl_b32 s10, s4, 7"); A(f"s_sub_u32 s11, {2<<20}, s10"); A("s_add_u32 s10, s10, s9")
    srd(44, 20, "s10", "s11")
    A("v_lshlrev_b32 v5, 9, v3"); A("v_lshlrev_b32 v6, 4, v4"); A("v_add_u32 v5, v5, v6")
    A("s_lshl_b32 s9, s3, 14"); A("v_add_u32 v6, s9, v5")
    A("s_lshl_b32 s9, s3, 12"); A("v_add_u32 v5, s9, v5")
    ops = []
    def wait_for(tag):
        idx = max(i for i, t in enumerate(ops) if t == tag)
        n = len(ops) - 1 - idx
        A(f"s_waitcnt vmcnt({min(n,63)})")
    landed = set()
    def throttle(n):
        if len(ops) > n:
            A(f"s_waitcnt vmcnt({n})")
            for t in ops[:len(ops) - n]: landed.add(t)
            for t in ops[len(ops) - n:]: landed.discard(t)
    def issue(e):
        r = RING + (e % NG) * 16
        if e < 32: A(f"s_mov_b32 s48, {e*16384}")
        else: A(f"s_mov_b32 s48, {(e-32)*65536}")
        if not perload: throttle(D - 4)
        for j in range(4):
            if perload: throttle(D - 1)
            if e < 32: A(f"buffer_load_dwordx4 v[{r+4*j}:{r+4*j+3}], v5, s[40:43], s48 offen offset:{128*j} nt")
            else: A(f"buffer_load_dwordx4 v[{r+4*j}:{r+4*j+3}], v{6+j}, s[44:47], s48 offen nt")
            ops.append(e)
    def consume_k(c):
        if c not in landed: wait_for(c)
        r = RING + (c % NG) * 16
        for j in range(4): A(f"v_mov_b32 v{12+j}, 0")
        for k in range(4):
            for j in range(4): A(f"v_dot2c_f32_bf16 v{12+j}, v{r+4*j+k}, v{Q+4*j+k}")
        A("v_add_f32 v12, v12, v13"); A("v_add_f32 v14, v14, v15"); A("v_add_f32 v12, v12, v14")
        A("v_add_f32_dpp v12, v12, v12 quad_perm:[1,0,3,2] row_mask:0xf bank_mask:0xf")
        A("v_add_f32_dpp v12, v12, v12 quad_perm:[2,3,0,1] row_mask:0xf bank_mask:0xf")
        A("v_add_f32_dpp v12, v12, v12 row_half_mirror row_mask:0xf bank_mask:0xf")
        dst = 16 + ((c >> 3) & 1)
        A(f"v_cndmask_b32 v{dst}, v{dst}, v12, s[{64+2*(c&7)}:{65+2*(c&7)}]")
        if c % 16 == 15:
            A("v_cvt_pk_bf16_f32 v18, v16, v17")
            A("v_min_u32 v18, -2, v18")
            A(f"buffer_store_dword v18, v10, s[12:15], s49 offen offset:{256*(c>>4)} sc1")
            ops.append("st")
    PM, PA, PP, ACC = Q, Q + 4, 12, Q + 12
    def read_p(c):
        A(f"ds_read_b128 v[{PP+4*(c&1)}:{PP+4*(c&1)+3}], v11 offset:{L_P + c*512}")
    def consume_v(c):
        e = 32 + c
        A("s_waitcnt lgkmcnt(0)")
        if c + 1 < 32: read_p(c + 1)
        if e not in landed: wait_for(e)
        r = RING + (e % NG) * 16
        p = PP + 4 * (c & 1)
        def ands(j):
            for k in range(4): A(f"v_and_b32 v{PA+4*(j&1)+k}, v{p+j}, v{PM+k}")
        def mf(j):
            a = PA + 4 * (j & 1)
            A(f"v_mfma_f32_16x16x32_bf16 v[{ACC}:{ACC+3}], v[{a}:{a+3}], v[{r+4*j}:{r+4*j+3}], v[{ACC}:{ACC+3}]")
        ands(0); ands(1); mf(0); ands(2); mf(1); ands(3); mf(2); mf(3)

    first = (D + 3) // 4
    for e in range(first): issue(e)
    for j in range(1, 4): A(f"v_add_u32 v{6+j}, {4096*j}, v6")
    A("v_lshlrev_b32 v10, 2, v1")
    A("s_lshl_b32 s49, s7, 13"); A("s_lshl_b32 s9, s4, 11"); A("s_add_u32 s49, s49, s9")
    A("s_lshl_b32 s9, s3, 9"); A("s_add_u32 s49, s49, s9"); A(f"s_add_u32 s49, s49, {WS_SX}")
    A("v_lshlrev_b32 v11, 4, v3"); A("s_lshl_b32 s9, s3, 7"); A("v_add_u32 v11, s9, v11")
    for c in range(8):
        A(f"s_mov_b32 s{64+2*c}, {0x01010101 << c:#x}"); A(f"s_mov_b32 s{65+2*c}, {0x01010101 << c:#x}")
    A("v_mov_b32 v16, 0"); A("v_mov_b32 v17, 0")
    A("s_barrier")
    kc = 0; vc = 0
    for e in range(first, 64):
        if e - NG >= 0 and e - NG < 32 and kc <= e - NG:
            if kc == 0:
                A("s_barrier")
                stamp(1)
                A("v_lshlrev_b32 v19, 4, v4")
                for j in range(4): A(f"ds_read_b128 v[{Q+4*j}:{Q+4*j+3}], v19 offset:{L_Q+128*j}")
                A("s_waitcnt lgkmcnt(0)")
            consume_k(kc); kc += 1
        if e >= 32:
            while kc < 32 and kc in landed:
                consume_k(kc); kc += 1
                if kc == 32:
                    stamp(2)
                    A("s_mov_b64 exec, 1"); A(f"v_mov_b32 v19, {L_CNT+4}"); A("v_mov_b32 v18, 1")
                    A("ds_add_u32 v19, v18"); A("s_mov_b64 exec, -1")
                    A("v_and_b32 v19, 1, v1"); A("v_cmp_eq_u32 vcc, 1, v19")
                    A("v_mov_b32 v18, 0xffff"); A("v_mov_b32 v19, 0xffff0000"); A("v_cndmask_b32 v18, v18, v19, vcc")
                    A("v_lshrrev_b32 v19, 1, v4")
                    for k in range(4):
                        A(f"v_cmp_eq_u32 vcc, {k}, v19"); A(f"v_cndmask_b32 v{PM+k}, 0, v18, vcc")
                    for k in range(4): A(f"v_mov_b32 v{ACC+k}, 0")
        if e - NG >= 32:
            assert kc == 32
            if vc == 0:
                A("s_barrier")
                stamp(3)
                read_p(0)
            consume_v(vc); vc += 1
        issue(e)
    while vc < 32:
        consume_v(vc); vc += 1
    stamp(4)
    A("v_lshrrev_b32 v18, 4, v1"); A("v_and_b32 v18, 1, v18"); A("v_lshlrev_b32 v18, 4, v18")
    A("v_lshlrev_b32 v19, 5, v4"); A("v_add_u32 v19, v19, v18")
    A("s_mov_b32 exec_lo, 0x00ff00ff"); A("s_mov_b32 exec_hi, 0xff00ff00")
    for k in range(4): A(f"ds_add_f32 v19, v{ACC+k} offset:{L_OACC+4*k}")
    A("s_waitcnt lgkmcnt(0)")
    A("s_barrier")
    stamp(5)
    write_stamps()
    A("L_exit:")
    A("s_endpgm")

    A("L_service:")
    X = 8
    T = 16
    AV = 40
    MK = 56
    MN = 60
    AS = 64
    DD = 72
    TG = 76
    WQ = 80
    WO = 136
    W2 = 200
    A("s_sub_u32 s3, s3, 4")
    A("s_mul_i32 s9, s5, 896"); srd(40, 16, "s9", 896)
    A("v_lshrrev_b32 v5, 5, v1"); A("v_mul_u32_u24 v5, 14, v5"); A("v_and_b32 v6, 3, v1"); A("v_lshl_add_u32 v5, v6, 2, v5")
    A("v_bfe_u32 v6, v1, 2, 2"); A("v_lshlrev_b32 v6, 1, v6"); A("v_bfe_u32 v7, v1, 4, 1"); A("v_add_u32 v6, v6, v7")
    A("v_lshl_add_u32 v7, v5, 3, v6"); A("v_lshlrev_b32 v7, 1, v7")
    for u in range(2):
        for e in range(4): A(f"buffer_load_ushort v{X+4*u+e}, v7, s[40:43], 0 offen offset:{u*448+e*16}")
    A("v_mov_b32 v2, 0"); A("s_lshl_b32 s50, s7, 7")
    A(f"buffer_load_dwordx2 v[{TG}:{TG+1}], v2, s[12:15], s50 offen sc1")
    A("s_lshl_b32 s9, s6, 9"); A("s_lshl_b32 s10, s4, 7"); A("s_add_u32 s9, s9, s10")
    A(f"s_mul_i32 s10, s3, {112*8192}"); A("s_add_u32 s9, s9, s10"); A(f"s_sub_u32 s10, {448*8192}, s9")
    srd(44, 22, "s9", "s10")
    A(f"v_lshlrev_b32 v{T}, 13, v3"); A(f"v_lshl_add_u32 v{T}, v4, 4, v{T}")
    for t in range(14):
        A(f"s_mov_b32 s48, {t*65536}")
        A(f"buffer_load_dwordx4 v[{WQ+4*t}:{WQ+4*t+3}], v{T}, s[44:47], s48 offen {wpol}")
    A("v_lshlrev_b32 v78, 8, v6"); A("v_lshrrev_b32 v5, 5, v1"); A("v_lshl_add_u32 v78, v5, 6, v78")
    A("v_and_b32 v5, 3, v1"); A("v_lshl_add_u32 v78, v5, 4, v78")
    A("s_lshl_b32 s9, s3, 6"); A("v_lshlrev_b32 v79, 8, v3"); A("v_add_u32 v79, s9, v79")
    for k in range(4): A(f"v_mov_b32 v{T+4+k}, -1")
    for k in range(4): A(f"v_mov_b32 v{T+8+k}, 0")
    A(f"v_lshlrev_b32 v{T+1}, 4, v1")
    A("s_cmp_eq_u32 s3, 0"); A("s_cbranch_scc0 L_f1")
    A(f"ds_write_b128 v{T+1}, v[{T+8}:{T+11}] offset:{L_QACC}")
    A("s_lshl_b32 s9, s7, 13"); A("s_lshl_b32 s10, s4, 11"); A("s_add_u32 s9, s9, s10"); A(f"s_add_u32 s9, s9, {WS_SX}")
    A(f"buffer_store_dwordx4 v[{T+4}:{T+7}], v{T+1}, s[12:15], s9 offen sc1")
    A(f"buffer_store_dwordx4 v[{T+4}:{T+7}], v{T+1}, s[12:15], s9 offen offset:1024 sc1")
    A("s_branch L_f3")
    A("L_f1:")
    A("s_cmp_eq_u32 s3, 1"); A("s_cbranch_scc0 L_f2")
    A("s_and_b32 s10, s8, 63")
    A("s_lshl_b32 s9, s5, 17"); A("s_lshl_b32 s10, s10, 11"); A("s_add_u32 s9, s9, s10"); A(f"s_add_u32 s9, s9, {WS_ZX}")
    A("s_cmp_lt_u32 s8, 56"); A("s_cbranch_scc0 L_f3")
    A(f"buffer_store_dwordx4 v[{T+4}:{T+7}], v{T+1}, s[12:15], s9 offen sc1")
    A(f"buffer_store_dwordx4 v[{T+4}:{T+7}], v{T+1}, s[12:15], s9 offen offset:1024 sc1")
    A("s_branch L_f3")
    A("L_f2:")
    A("s_cmp_eq_u32 s3, 2"); A("s_cbranch_scc0 L_f3")
    A("s_cmp_eq_u32 s8, 0"); A("s_cbranch_scc0 L_f3")
    A("s_lshl_b32 s9, s5, 12"); A(f"s_add_u32 s9, s9, {WS_YA}")
    for k in range(3): A(f"buffer_store_dwordx4 v[{T+8}:{T+11}], v{T+1}, s[12:15], s9 offen offset:{1024*k} sc1")
    A("L_f3:")
    A(f"v_and_b32 v{T}, 1, v1"); A(f"v_cmp_eq_u32 vcc, 1, v{T}")
    A(f"v_mov_b32 v{T+2}, 0xffff"); A(f"v_mov_b32 v{T+3}, 0xffff0000"); A(f"v_cndmask_b32 v{T+2}, v{T+2}, v{T+3}, vcc")
    A(f"v_lshrrev_b32 v{T}, 1, v4")
    for k in range(4):
        A(f"v_cmp_eq_u32 vcc, {k}, v{T}"); A(f"v_cndmask_b32 v{MK+k}, 0, v{T+2}, vcc")
    A(f"v_bfe_u32 v{T}, v1, 1, 3")
    for k in range(4):
        A(f"v_cmp_eq_u32 vcc, {2*k}, v{T}"); A(f"v_cndmask_b32 v{MN+k}, 0, v{T+2}, vcc")
    A("s_mov_b32 s52, 0x77777777"); A("s_mov_b32 s53, 0x77777777")
    A("s_waitcnt lgkmcnt(0)")
    A("s_barrier")

    def wave_sum(v, tmp_s, op="add"):
        A(f"v_{op}_f32_dpp v{v}, v{v}, v{v} quad_perm:[1,0,3,2] row_mask:0xf bank_mask:0xf")
        A(f"v_{op}_f32_dpp v{v}, v{v}, v{v} quad_perm:[2,3,0,1] row_mask:0xf bank_mask:0xf")
        A(f"v_{op}_f32_dpp v{v}, v{v}, v{v} row_half_mirror row_mask:0xf bank_mask:0xf")
        A(f"v_{op}_f32_dpp v{v}, v{v}, v{v} row_mirror row_mask:0xf bank_mask:0xf")
        for i in range(4): A(f"v_readlane_b32 s{tmp_s+i}, v{v}, {16*i}")
        A(f"v_mov_b32 v{v}, s{tmp_s}")
        for i in range(1, 4): A(f"v_{op}_f32 v{v}, s{tmp_s+i}, v{v}")
    def rbf(v, dst=None):
        dst = v if dst is None else dst
        A(f"v_cvt_pk_bf16_f32 v{dst}, v{v}, v{v}"); A(f"v_and_b32 v{dst}, 0xffff0000, v{dst}")
    def layernorm(S, table):
        s = T; d = T + 4
        A(f"v_add_f32 v{s}, v{S}, v{S+1}"); A(f"v_add_f32 v{s+1}, v{S+2}, v{S+3}")
        A(f"v_add_f32 v{s+2}, v{S+4}, v{S+5}"); A(f"v_add_f32 v{s+3}, v{S+6}, v{S+7}")
        A(f"v_add_f32 v{s}, v{s}, v{s+1}"); A(f"v_add_f32 v{s+2}, v{s+2}, v{s+3}"); A(f"v_add_f32 v{s}, v{s}, v{s+2}")
        wave_sum(s, 56)
        A(f"v_mul_f32 v{s}, {1.0/448:.10e}, v{s}")
        for i in range(8): A(f"v_sub_f32 v{d+i}, v{S+i}, v{s}")
        for i in (2, 3, 6, 7): A(f"v_cndmask_b32 v{d+i}, 0, v{d+i}, s[52:53]")
        A(f"v_mul_f32 v{s+1}, v{d}, v{d}"); A(f"v_mul_f32 v{s+2}, v{d+1}, v{d+1}")
        for i in range(2, 8): A(f"v_fmac_f32 v{s+1+(i&1)}, v{d+i}, v{d+i}")
        A(f"v_add_f32 v{s+1}, v{s+1}, v{s+2}")
        rbf(s)
        wave_sum(s + 1, 56)
        for i in range(8): A(f"v_sub_f32 v{d+i}, v{S+i}, v{s}")
        A(f"v_mul_f32 v{s+1}, {1.0/448:.10e}, v{s+1}")
        rbf(s + 1)
        A(f"v_add_f32 v{s+1}, 0x3727c5ac, v{s+1}")
        rbf(s + 1)
        A(f"v_sqrt_f32 v{s+1}, v{s+1}")
        for i in range(8): rbf(d + i)
        rbf(s + 1)
        A(f"v_rcp_f32 v{s+1}, v{s+1}")
        for i in range(8): A(f"v_mul_f32 v{d+i}, v{d+i}, v{s+1}")
        for i in range(8): A(f"v_cvt_pk_bf16_f32 v{d+i}, v{d+i}, v{d+i}")
        A(f"ds_write_b128 v78, v[{d}:{d+3}] offset:{table}")
        A(f"ds_write_b128 v78, v[{d+4}:{d+7}] offset:{table+128}")
        A("s_waitcnt lgkmcnt(0)")
        for i in range(4): A(f"ds_read_b128 v[{AV+4*i}:{AV+4*i+3}], v79 offset:{table+16*i}")
    def gemv_k(W, n):
        def ands(t):
            for k in range(4): A(f"v_and_b32 v{AS+4*(t&1)+k}, v{AV+t}, v{MK+k}")
        for k in range(4): A(f"v_mov_b32 v{DD+k}, 0")
        ands(0)
        for t in range(n):
            if t + 1 < n: ands(t + 1)
            a = AS + 4 * (t & 1)
            A(f"v_mfma_f32_16x16x32_bf16 v[{DD}:{DD+3}], v[{a}:{a+3}], v[{W+4*t}:{W+4*t+3}], v[{DD}:{DD+3}]")
    def gemv_n(W, n, val):
        def ands(t):
            for k in range(4): A(f"v_and_b32_dpp v{AS+4*(t&1)+k}, v{val}, v{MN+k} row_newbcast:{t} row_mask:0xf bank_mask:0xf")
        for k in range(4): A(f"v_mov_b32 v{DD+k}, 0")
        ands(0)
        for t in range(n):
            if t + 1 < n: ands(t + 1)
            a = AS + 4 * (t & 1)
            A(f"v_mfma_f32_16x16x32_bf16 v[{DD}:{DD+3}], v[{a}:{a+3}], v[{W+4*t}:{W+4*t+3}], v[{DD}:{DD+3}]")
    def acc_to_lds(base):
        A(f"v_lshrrev_b32 v{T}, 4, v1"); A(f"v_and_b32 v{T}, 1, v{T}"); A(f"v_lshlrev_b32 v{T}, 4, v{T}")
        A(f"v_lshl_add_u32 v{T}, v4, 5, v{T}")
        A("s_mov_b32 exec_lo, 0x00ff00ff"); A("s_mov_b32 exec_hi, 0xff00ff00")
        for k in range(4): A(f"ds_add_f32 v{T}, v{DD+k} offset:{base+4*k}")
        A("s_mov_b64 exec, -1")
    def spin_tail(lbl, sl=1):
        A(f"s_sleep {sl}"); A("s_sub_u32 s54, s54, 1"); A("s_cmp_lg_u32 s54, 0"); A(f"s_cbranch_scc1 {lbl}")

    A("s_waitcnt vmcnt(15)")
    for i in range(8): A(f"v_lshlrev_b32 v{X+i}, 16, v{X+i}")
    for i in (2, 3, 6, 7): A(f"v_cndmask_b32 v{X+i}, 0, v{X+i}, s[52:53]")
    layernorm(X, L_XN)
    A("s_waitcnt vmcnt(0) lgkmcnt(0)")
    stamp(1)
    gemv_k(WQ, 14)
    acc_to_lds(L_QACC)
    A(f"v_add_co_u32 v{TG}, vcc, 0x7f4a7c15, v{TG}"); A(f"v_mov_b32 v{T+1}, 0x9e3779b9")
    A(f"v_addc_co_u32 v{TG+1}, vcc, v{T+1}, v{TG+1}, vcc")
    A("s_waitcnt lgkmcnt(0)")
    A("s_mov_b64 exec, 1"); A(f"v_mov_b32 v{T}, {L_CNT}"); A(f"v_mov_b32 v{T+1}, 1")
    A(f"ds_add_rtn_u32 v{T+1}, v{T}, v{T+1}")
    A("s_waitcnt lgkmcnt(0)")
    A(f"v_readfirstlane_b32 s9, v{T+1}")
    A("s_mov_b64 exec, -1")
    A("s_lshl_b32 s51, s7, 11"); A(f"s_add_u32 s51, s51, {WS_QX}")
    A(f"v_lshlrev_b32 v{T+2}, 3, v1")
    A("s_cmp_eq_u32 s9, 3"); A("s_cbranch_scc0 L_nopub")
    A(f"v_lshlrev_b32 v{T}, 2, v1")
    A(f"ds_read_b32 v{T+4}, v{T} offset:{L_QACC}")
    A("s_lshl_b32 s9, s4, 9"); A("s_add_u32 s9, s9, s51")
    A("s_waitcnt lgkmcnt(0)")
    A(f"v_cvt_pk_bf16_f32 v{T+4}, v{T+4}, v{T+4}")
    A(f"v_mov_b32 v{T+3}, 0xffff"); A(f"v_bfi_b32 v{T+4}, v{T+3}, v{T+4}, v{TG}")
    A(f"v_mov_b32 v{T+5}, v{TG+1}")
    A(f"buffer_store_dwordx2 v[{T+4}:{T+5}], v{T+2}, s[12:15], s9 offen sc1")
    A("L_nopub:")
    A("s_cmp_eq_u32 s3, 2"); A("s_cbranch_scc0 L_noflag")
    A("s_cmp_eq_u32 s8, 0"); A("s_cbranch_scc0 L_noflag")
    srd(40, 36, None, 256)
    A("s_lshl_b32 s9, s5, 6"); A(f"v_mov_b32 v{T+6}, 1"); A("s_mov_b64 exec, 1")
    A(f"buffer_store_dword v{T+6}, v2, s[40:43], s9 offen sc1")
    A("s_mov_b64 exec, -1")
    A("L_noflag:")
    A("s_lshl_b32 s9, s3, 9"); A("s_add_u32 s9, s9, s51")
    A(f"v_lshrrev_b32 v{T+6}, 16, v{TG}")
    A(f"s_mov_b32 s54, {SPIN}")
    A("L_pollq:")
    A(f"buffer_load_dwordx2 v[{T+4}:{T+5}], v{T+2}, s[12:15], s9 offen sc1")
    A("s_waitcnt vmcnt(0)")
    A(f"v_lshrrev_b32 v{T+7}, 16, v{T+4}")
    A(f"v_cmp_eq_u32 vcc, v{T+7}, v{T+6}"); A(f"v_cmp_eq_u32 s[56:57], v{T+5}, v{TG+1}")
    A("s_and_b64 vcc, vcc, s[56:57]"); A("s_cmp_eq_u64 vcc, -1"); A("s_cbranch_scc1 L_gotq")
    spin_tail("L_pollq")
    A("L_gotq:")
    A(f"v_lshlrev_b32 v{T}, 1, v1"); A("s_lshl_b32 s9, s3, 7"); A(f"v_add_u32 v{T}, s9, v{T}")
    A(f"ds_write_b16 v{T}, v{T+4} offset:{L_Q}")
    stamp(2)
    A("s_lshl_b32 s9, s6, 2"); A("s_add_u32 s9, s9, s4"); A(f"s_mul_i32 s9, s9, {64*896}")
    A(f"s_mul_i32 s10, s3, 224"); A("s_add_u32 s9, s9, s10"); A(f"s_sub_u32 s10, {4096*896}, s9")
    srd(40, 24, "s9", "s10")
    A(f"v_lshrrev_b32 v{T+8}, 4, v1"); A(f"v_mul_u32_u24 v{T+8}, 896, v{T+8}"); A(f"v_and_b32 v{T+9}, 15, v1")
    A(f"v_lshl_add_u32 v{T+8}, v{T+9}, 4, v{T+8}")
    A("s_mov_b32 exec_lo, 0x3fff3fff"); A("s_mov_b32 exec_hi, 0x3fff3fff")
    for t in range(16):
        A(f"s_mov_b32 s48, {t*3584}")
        A(f"buffer_load_dwordx4 v[{WO+4*t}:{WO+4*t+3}], v{T+8}, s[40:43], s48 offen {wpol}")
    A("s_mov_b64 exec, -1")
    A("s_waitcnt lgkmcnt(0)")
    A("s_barrier")
    A("s_cmp_lt_u32 s8, 56"); A("s_cbranch_scc0 L_now13")
    A(f"s_mul_i32 s9, s8, {32*896}"); A(f"s_mul_i32 s10, s3, 224"); A("s_add_u32 s9, s9, s10"); A(f"s_sub_u32 s10, {1792*896}, s9")
    srd(40, 32, "s9", "s10")
    A("s_mov_b32 exec_lo, 0x3fff3fff"); A("s_mov_b32 exec_hi, 0x3fff3fff")
    for t in range(8):
        A(f"s_mov_b32 s48, {t*3584}")
        A(f"buffer_load_dwordx4 v[{W2+4*t}:{W2+4*t+3}], v{T+8}, s[40:43], s48 offen {wpol}")
    A("s_mov_b64 exec, -1")
    A("s_lshl_b32 s9, s8, 6"); A(f"s_mul_i32 s10, s3, {112*3584}"); A("s_add_u32 s9, s9, s10"); A(f"s_sub_u32 s10, {448*3584}, s9")
    srd(40, 28, "s9", "s10"); srd(44, 30, "s9", "s10")
    A(f"v_mul_u32_u24 v{T+8}, 3584, v3"); A(f"v_and_b32 v{T+9}, 3, v1"); A(f"v_lshl_add_u32 v{T+8}, v{T+9}, 4, v{T+8}")
    for half, sr in ((0x0f0f0f0f, 40), (0xf0f0f0f0, 44)):
        A(f"s_mov_b32 exec_lo, {half:#x}"); A(f"s_mov_b32 exec_hi, {half:#x}")
        for t in range(14):
            A(f"s_mov_b32 s48, {t*8*3584}")
            A(f"buffer_load_dwordx4 v[{WQ+4*t}:{WQ+4*t+3}], v{T+8}, s[{sr}:{sr+3}], s48 offen {wpol}")
    A("s_mov_b64 exec, -1")
    A("L_now13:")
    A("s_or_b32 s9, s3, s4"); A("s_cmp_eq_u32 s9, 0"); A("s_cbranch_scc0 L_nobump")
    A("s_mov_b64 exec, 1")
    A(f"buffer_store_dwordx2 v[{TG}:{TG+1}], v2, s[12:15], s50 offen sc1")
    A("s_mov_b64 exec, -1")
    A("L_nobump:")
    srd(40, 36, None, 256)
    A("s_lshl_b32 s9, s5, 6"); A(f"s_mov_b32 s54, {SPIN}")
    A("L_pollz:")
    A(f"buffer_load_dword v{T}, v2, s[40:43], s9 offen sc1")
    A("s_waitcnt vmcnt(0)")
    A(f"v_readfirstlane_b32 s10, v{T}")
    A("s_cmp_eq_u32 s10, 1"); A("s_cbranch_scc1 L_gotz")
    spin_tail("L_pollz", 8)
    A("L_gotz:")
    A(f"v_mov_b32 v{T+1}, {L_CNT}"); A(f"s_mov_b32 s54, {SPIN*8}")
    A("L_pollk:")
    A(f"ds_read_b32 v{T}, v{T+1} offset:4")
    A("s_waitcnt lgkmcnt(0)")
    A(f"v_readfirstlane_b32 s10, v{T}")
    A("s_cmp_eq_u32 s10, 4"); A("s_cbranch_scc1 L_gotk")
    spin_tail("L_pollk", 2)
    A("L_gotk:")
    stamp(3)
    A("s_lshl_b32 s9, s7, 13"); A("s_lshl_b32 s10, s3, 11"); A("s_add_u32 s9, s9, s10"); A(f"s_add_u32 s9, s9, {WS_SX}")
    A(f"v_lshlrev_b32 v{T+1}, 4, v1"); A(f"s_mov_b32 s54, {SPIN}")
    SW = T + 8
    A("L_polls:")
    A(f"buffer_load_dwordx4 v[{SW}:{SW+3}], v{T+1}, s[12:15], s9 offen sc1")
    A(f"buffer_load_dwordx4 v[{SW+4}:{SW+7}], v{T+1}, s[12:15], s9 offen offset:1024 sc1")
    A("s_waitcnt vmcnt(0)")
    A(f"v_max_u32 v{T}, v{SW}, v{SW+1}")
    A(f"v_max3_u32 v{T}, v{T}, v{SW+2}, v{SW+3}"); A(f"v_max3_u32 v{T}, v{T}, v{SW+4}, v{SW+5}"); A(f"v_max3_u32 v{T}, v{T}, v{SW+6}, v{SW+7}")
    A(f"v_cmp_eq_u32 vcc, -1, v{T}")
    A("s_cmp_eq_u64 vcc, 0"); A("s_cbranch_scc1 L_gots")
    spin_tail("L_polls", 2)
    A("L_gots:")
    stamp(4)
    for i in range(8):
        A(f"v_lshlrev_b32 v{AV+i}, 16, v{SW+i}"); A(f"v_and_b32 v{AV+8+i}, 0xffff0000, v{SW+i}")
    A(f"v_max_f32 v{T}, v{AV}, v{AV+1}")
    for i in range(2, 16, 2): A(f"v_max3_f32 v{T}, v{T}, v{AV+i}, v{AV+i+1}")
    wave_sum(T, 56, "max")
    CE = 1.4426950408889634 / 16
    A(f"s_mov_b32 s55, {CE:.10e}".replace(f"{CE:.10e}", hex(f2u(CE))))
    for i in range(16): A(f"v_sub_f32 v{AV+i}, v{AV+i}, v{T}")
    for i in range(16): A(f"v_mul_f32 v{AV+i}, s55, v{AV+i}")
    for i in range(16): A(f"v_exp_f32 v{AV+i}, v{AV+i}")
    A(f"v_add_f32 v{T+1}, v{AV}, v{AV+1}"); A(f"v_add_f32 v{T+2}, v{AV+2}, v{AV+3}")
    for i in range(4, 16): A(f"v_add_f32 v{T+1+(i&1)}, v{T+1+(i&1)}, v{AV+i}")
    A(f"v_add_f32 v{T+1}, v{T+1}, v{T+2}")
    wave_sum(T + 1, 56)
    A("s_lshl_b32 s9, s3, 3"); A(f"v_mov_b32 v{T+2}, s9"); A("s_mov_b64 exec, 1")
    A(f"ds_write_b64 v{T+2}, v[{T}:{T+1}] offset:{L_CNT+16}")
    A(f"v_mov_b32 v{T+2}, {L_CNT}"); A(f"v_mov_b32 v{T+3}, 1")
    A("s_waitcnt lgkmcnt(0)")
    A(f"ds_add_u32 v{T+2}, v{T+3} offset:8")
    A("s_mov_b64 exec, -1")
    A(f"v_mov_b32 v{T+2}, {L_CNT}"); A(f"s_mov_b32 s54, {SPIN*8}")
    A("L_pollm:")
    A(f"ds_read_b32 v{T+3}, v{T+2} offset:8")
    A("s_waitcnt lgkmcnt(0)")
    A(f"v_readfirstlane_b32 s10, v{T+3}")
    A("s_cmp_eq_u32 s10, 4"); A("s_cbranch_scc1 L_gotm")
    spin_tail("L_pollm", 1)
    A("L_gotm:")
    A(f"ds_read_b128 v[{SW}:{SW+3}], v{T+2} offset:16"); A(f"ds_read_b128 v[{SW+4}:{SW+7}], v{T+2} offset:32")
    A("s_waitcnt lgkmcnt(0)")
    A(f"v_max_f32 v{T+3}, v{SW}, v{SW+2}"); A(f"v_max3_f32 v{T+3}, v{T+3}, v{SW+4}, v{SW+6}")
    for i in range(4): A(f"v_sub_f32 v{SW+2*i}, v{SW+2*i}, v{T+3}")
    A(f"v_sub_f32 v{T}, v{T}, v{T+3}")
    for i in range(4): A(f"v_mul_f32 v{SW+2*i}, s55, v{SW+2*i}")
    A(f"v_mul_f32 v{T}, s55, v{T}")
    for i in range(4): A(f"v_exp_f32 v{SW+2*i}, v{SW+2*i}")
    A(f"v_exp_f32 v{T}, v{T}")
    A(f"v_mul_f32 v{T+1}, v{SW}, v{SW+1}")
    for i in range(1, 4): A(f"v_fmac_f32 v{T+1}, v{SW+2*i}, v{SW+2*i+1}")
    A(f"v_rcp_f32 v{T+1}, v{T+1}")
    A(f"v_mul_f32 v{T}, v{T}, v{T+1}")
    A(f"v_bfe_u32 v{T+2}, v1, 4, 1"); A(f"v_lshlrev_b32 v{T+2}, 11, v{T+2}")
    A(f"v_and_b32 v{T+3}, 1, v1"); A(f"v_lshl_add_u32 v{T+2}, v{T+3}, 9, v{T+2}")
    A(f"v_bfe_u32 v{T+3}, v1, 1, 3"); A(f"v_lshl_add_u32 v{T+2}, v{T+3}, 4, v{T+2}")
    A(f"v_lshrrev_b32 v{T+3}, 5, v1"); A(f"v_lshl_add_u32 v{T+2}, v{T+3}, 2, v{T+2}")
    A("s_lshl_b32 s9, s3, 12"); A(f"v_add_u32 v{T+2}, s9, v{T+2}")
    for i in range(16): A(f"v_mul_f32 v{AV+i}, v{AV+i}, v{T}")
    for i in range(16): A(f"v_cvt_pk_bf16_f32 v{AV+i}, v{AV+i}, v{AV+i}")
    for i in range(16):
        lohi = i >> 3; u = (i >> 2) & 1; e = i & 3
        A(f"ds_write_b32 v{T+2}, v{AV+i} offset:{L_P + e*128 + lohi*1024 + u*8}")
    A("s_waitcnt lgkmcnt(0)")
    A("s_barrier")
    stamp(5)
    A(f"v_and_b32 v{T+1}, 15, v1"); A(f"v_lshrrev_b32 v{T+2}, 4, v1")
    A(f"v_lshlrev_b32 v5, 4, v{T+1}"); A(f"v_lshl_add_u32 v5, v{T+2}, 2, v5")
    A("v_lshlrev_b32 v6, 2, v1")
    A("s_lshl_b32 s50, s5, 12"); A(f"s_add_u32 s50, s50, {WS_YA}")
    A("s_lshl_b32 s9, s3, 9"); A("s_add_u32 s51, s50, s9")
    A("s_waitcnt vmcnt(0)")
    A("s_barrier")
    stamp(6)
    A(f"ds_read_b32 v{T}, v5 offset:{L_OACC}")
    A("s_waitcnt lgkmcnt(0)")
    A(f"v_cvt_pk_bf16_f32 v{T}, v{T}, v{T}")
    gemv_n(WO, 16, T)
    A("s_mov_b32 exec_lo, 0x3fff3fff"); A("s_mov_b32 exec_hi, 0x3fff3fff")
    A(f"buffer_atomic_add_f32 v{DD}, v6, s[12:15], s51 offen sc1")
    A(f"buffer_atomic_add_f32 v{DD+1}, v6, s[12:15], s51 offen offset:256 sc1")
    A("s_mov_b64 exec, -1")
    A("s_waitcnt vmcnt(0)")
    A("s_barrier")
    A("s_cmp_eq_u32 s3, 0"); A("s_cbranch_scc0 L_nocnt")
    A(f"v_lshlrev_b32 v{T+1}, 7, v1"); A(f"v_mov_b32 v{T+2}, 1"); A("s_mov_b64 exec, 0xff")
    A(f"buffer_atomic_add v{T+2}, v{T+1}, s[12:15], s50 offen offset:2048 sc1")
    A("s_mov_b64 exec, -1")
    A("L_nocnt:")
    A("s_cmp_lt_u32 s8, 56"); A("s_cbranch_scc0 L_done")
    A("s_cmp_eq_u32 s3, 0"); A("s_cbranch_scc0 L_goty")
    A("s_and_b32 s9, s8, 7"); A("s_lshl_b32 s9, s9, 7"); A("s_add_u32 s9, s9, s50"); A(f"s_mov_b32 s54, {SPIN}")
    A("L_polly:")
    A(f"buffer_load_dword v{T}, v2, s[12:15], s9 offen offset:2048 sc1")
    A("s_waitcnt vmcnt(0)")
    A(f"v_readfirstlane_b32 s10, v{T}")
    A("s_cmp_eq_u32 s10, 64"); A("s_cbranch_scc1 L_goty")
    spin_tail("L_polly", 1)
    A("L_goty:")
    A("s_barrier")
    H = T + 16
    A(f"v_lshlrev_b32 v{T+1}, 4, v1")
    A(f"buffer_load_dwordx4 v[{H}:{H+3}], v{T+1}, s[12:15], s50 offen sc1")
    A(f"buffer_load_dwordx4 v[{H+4}:{H+7}], v{T+1}, s[12:15], s50 offen offset:1024 sc1")
    A("s_waitcnt vmcnt(0)")
    stamp(7)
    for i in range(8): rbf(H + i)
    for i in range(8): A(f"v_add_f32 v{H+i}, v{H+i}, v{X+i}")
    for i in range(8): rbf(H + i)
    for i in (2, 3, 6, 7): A(f"v_cndmask_b32 v{H+i}, 0, v{H+i}, s[52:53]")
    A(f"ds_write_b128 v78, v[{H}:{H+3}] offset:{L_H}")
    A(f"ds_write_b128 v78, v[{H+4}:{H+7}] offset:{L_H+128}")
    layernorm(H, L_HN)
    A("s_waitcnt lgkmcnt(0)")
    gemv_k(WQ, 14)
    acc_to_lds(L_GU)
    A("s_waitcnt lgkmcnt(0)")
    A("s_barrier")
    A(f"v_and_b32 v{T+1}, 0x7f, v5")
    A(f"ds_read_b32 v{T+2}, v{T+1} offset:{L_GU}"); A(f"ds_read_b32 v{T+3}, v{T+1} offset:{L_GU+128}")
    A("s_waitcnt lgkmcnt(0)")
    rbf(T + 2); rbf(T + 3)
    A(f"v_mul_f32 v{T}, {hex(f2u(-1.4426950408889634))}, v{T+2}")
    A(f"v_exp_f32 v{T}, v{T}")
    A(f"v_add_f32 v{T}, 1.0, v{T}")
    A(f"v_rcp_f32 v{T}, v{T}")
    A(f"v_mul_f32 v{T}, v{T}, v{T+2}")
    rbf(T)
    A(f"v_mul_f32 v{T}, v{T}, v{T+3}")
    A(f"v_cvt_pk_bf16_f32 v{T}, v{T}, v{T}")
    gemv_n(W2, 8, T)
    A(f"v_and_b32 v{T+1}, 15, v1"); A(f"v_lshrrev_b32 v{T+2}, 4, v1")
    A(f"v_lshlrev_b32 v{T+1}, 11, v{T+1}"); A(f"v_lshl_add_u32 v{T+1}, v{T+2}, 3, v{T+1}")
    A("s_lshl_b32 s50, s5, 17"); A(f"s_add_u32 s50, s50, {WS_ZX}")
    A(f"s_mul_i32 s9, s3, {14*2048}"); A("s_lshl_b32 s10, s8, 5"); A("s_add_u32 s9, s9, s10"); A("s_add_u32 s9, s9, s50")
    A(f"v_min_u32 v{DD}, -2, v{DD}"); A(f"v_min_u32 v{DD+1}, -2, v{DD+1}")
    A("s_mov_b32 exec_lo, 0x3fff3fff"); A("s_mov_b32 exec_hi, 0x3fff3fff")
    A(f"buffer_store_dwordx2 v[{DD}:{DD+1}], v{T+1}, s[12:15], s9 offen sc1")
    A("s_mov_b64 exec, -1")
    A("s_cmp_eq_u32 s3, 0"); A("s_cbranch_scc0 L_done")
    A("s_mul_i32 s9, s8, 4682"); A("s_lshr_b32 s9, s9, 16")
    A("s_mul_i32 s10, s9, 14"); A("s_sub_u32 s10, s8, s10")
    A("s_lshl_b32 s9, s9, 6"); A("s_lshl_b32 s10, s10, 2"); A("s_add_u32 s9, s9, s10")
    A(f"v_and_b32 v{T+1}, 1, v1"); A(f"v_lshlrev_b32 v{T+1}, 10, v{T+1}"); A(f"v_add_u32 v{T+1}, s9, v{T+1}")
    for r in range(4): A(f"ds_read_b32 v{H+r}, v{T+1} offset:{L_H+256*r}")
    A("s_lshl_b32 s9, s8, 11"); A("s_add_u32 s9, s9, s50")
    A(f"v_lshlrev_b32 v{T+1}, 4, v1"); A(f"s_mov_b32 s54, {SPIN}")
    for k in range(4): A(f"v_mov_b32 v{SW+4+k}, 0")
    A("L_pollo:")
    A(f"buffer_load_dwordx4 v[{SW}:{SW+3}], v{T+1}, s[12:15], s9 offen sc1")
    A("s_mov_b32 exec_hi, 0xffff")
    A(f"buffer_load_dwordx4 v[{SW+4}:{SW+7}], v{T+1}, s[12:15], s9 offen offset:1024 sc1")
    A("s_mov_b32 exec_hi, -1")
    A("s_waitcnt vmcnt(0)")
    A(f"v_max_u32 v{T}, v{SW}, v{SW+1}")
    A(f"v_max3_u32 v{T}, v{T}, v{SW+2}, v{SW+3}"); A(f"v_max3_u32 v{T}, v{T}, v{SW+4}, v{SW+5}"); A(f"v_max3_u32 v{T}, v{T}, v{SW+6}, v{SW+7}")
    A(f"v_cmp_eq_u32 vcc, -1, v{T}")
    A("s_cmp_eq_u64 vcc, 0"); A("s_cbranch_scc1 L_goto")
    spin_tail("L_pollo", 1)
    A("L_goto:")
    for k in range(4): A(f"v_add_f32 v{SW+k}, v{SW+k}, v{SW+4+k}")
    for rot in (8, 4, 2):
        for k in range(4): A(f"v_add_f32_dpp v{SW+k}, v{SW+k}, v{SW+k} row_ror:{rot} row_mask:0xf bank_mask:0xf")
    for k in range(4): A(f"v_mov_b32 v{SW+4+k}, v{SW+k}")
    for k in range(4): A(f"v_permlane16_swap_b32 v{SW+k}, v{SW+4+k}")
    for k in range(4): A(f"v_add_f32 v{SW+k}, v{SW+k}, v{SW+4+k}")
    for k in range(4): A(f"v_mov_b32 v{SW+4+k}, v{SW+k}")
    for k in range(4): A(f"v_permlane32_swap_b32 v{SW+k}, v{SW+4+k}")
    for k in range(4): A(f"v_add_f32 v{SW+k}, v{SW+k}, v{SW+4+k}")
    for k in range(4): rbf(SW + k)
    A("s_waitcnt lgkmcnt(0)")
    for k in range(4): A(f"v_add_f32 v{SW+k}, v{SW+k}, v{H+k}")
    A(f"v_cvt_pk_bf16_f32 v{T+2}, v{SW}, v{SW+1}"); A(f"v_cvt_pk_bf16_f32 v{T+3}, v{SW+2}, v{SW+3}")
    srd(40, 34, None, 3584)
    A("s_mul_i32 s9, s5, 896"); A("s_lshl_b32 s10, s8, 4"); A("s_add_u32 s9, s9, s10")
    A(f"v_lshlrev_b32 v{T+1}, 3, v1"); A("s_mov_b64 exec, 3")
    A(f"buffer_store_dwordx2 v[{T+2}:{T+3}], v{T+1}, s[40:43], s9 offen")
    A("s_mov_b64 exec, -1")
    A("L_done:")
    if stamps:
        A("s_waitcnt vmcnt(0)")
        A("s_memrealtime s[84:85]") if False else None
        A("s_add_u32 s3, s3, 4")
        A("s_memrealtime s[86:87]")
    write_stamps()
    A("s_endpgm")

    body = A.finish()
    out = HDR + f"; @launch grid=(256,1,1) block=(512,1,1) lds={LDS_SIZE}\n"
    out += f'.amdgcn_target "amdgcn-amd-amdhsa--gfx950"\n.text\n.globl {NAME}\n.p2align 8\n.type {NAME},@function\n'
    out += body
    out += f'''.section .rodata,"a"
.p2align 6
.amdhsa_kernel {NAME}
  .amdhsa_next_free_vgpr 256
  .amdhsa_next_free_sgpr 102
  .amdhsa_accum_offset 256
  .amdhsa_group_segment_fixed_size 0
  .amdhsa_kernarg_size 96
  .amdhsa_user_sgpr_count 2
  .amdhsa_user_sgpr_kernarg_segment_ptr 1
  .amdhsa_system_sgpr_workgroup_id_x 1
.end_amdhsa_kernel
'''
    return out

import struct
def f2u(f): return struct.unpack("<I", struct.pack("<f", f))[0]

if __name__ == "__main__":
    kw = eval("dict(" + (sys.argv[2] if len(sys.argv) > 2 else "") + ")")
    open(sys.argv[1], "w").write(gen(**kw))
```

```python
import sys, os
sys.path.insert(0, os.path.dirname(os.path.abspath(__file__)))
from asmlib import Asm

NAME = "sequential_preLN__mha_block_cached__glu_gated_swiglu__decode_kernel"
HDR = open(os.path.join(os.path.dirname(os.path.abspath(__file__)), "header.txt")).read()

WS_EP, WS_QX, WS_SX, WS_YA, WS_ZX, WS_TS = 0x0, 0x10000, 0x40000, 0x100000, 0x200000, 0x300000
WS_SIZE = 0x400000
L_P, L_Q, L_QACC, L_OACC, L_GU, L_CNT, L_XN, L_HN, L_H = 0x0, 0x4000, 0x4200, 0x4300, 0x4400, 0x4500, 0x4800, 0x5000, 0x5800
LDS_SIZE = 0x6000
SPIN = 200000

def gen(NG=13, D=8, stamps=False, wpol="", perload=True, dbg=False):
    if dbg: stamps = True
    A = Asm()
    nstamp = [0]
    def stamp(i):
        if stamps:
            A(f"s_memrealtime s[{84+2*i}:{85+2*i}]")
    def srd(d, base, off, size):
        if off is None:
            A(f"s_mov_b32 s{d}, s{base}"); A(f"s_mov_b32 s{d+1}, s{base+1}")
        else:
            A(f"s_add_u32 s{d}, s{base}, {off}"); A(f"s_addc_u32 s{d+1}, s{base+1}, 0")
        A(f"s_mov_b32 s{d+2}, {size}"); A(f"s_mov_b32 s{d+3}, 0x20000")
    def write_stamps(svc=False):
        if not stamps: return
        if dbg:
            if not svc: return
            A("s_cmp_eq_u32 s3, 4"); A("s_cbranch_scc0 L_exit")
            A("s_waitcnt lgkmcnt(0)")
            A("s_mov_b64 exec, 1")
            srd(40, 36, None, 256)
            A("v_mov_b32 v2, 0")
            A("s_not_b32 s84, s84")
            for i in range(8): A(f"v_mov_b32 v{8+i}, s{84+2*i}")
            for i in range(8):
                if not svc and i > 5: continue
                A(f"buffer_atomic_umax v{8+i}, v2, s[40:43], 0 offen offset:{(8+i)*4 if svc else (1+i)*4} sc1")
            A("s_waitcnt vmcnt(0)")
            return
        A("s_waitcnt lgkmcnt(0)")
        A("s_mov_b64 exec, 1")
        A("s_lshl_b32 s60, s2, 3"); A("s_add_u32 s60, s60, s3"); A("s_lshl_b32 s60, s60, 6"); A(f"s_add_u32 s60, s60, {WS_TS}")
        A("v_mov_b32 v2, 0")
        for i in range(8):
            A(f"v_mov_b32 v{8+i}, s{84+2*i}")
        A("s_getreg_b32 s61, hwreg(HW_REG_XCC_ID)")
        A("v_mov_b32 v16, s61")
        A("buffer_store_dwordx4 v[8:11], v2, s[12:15], s60 offen")
        A("buffer_store_dwordx4 v[12:15], v2, s[12:15], s60 offen offset:16")
        A("buffer_store_dword v16, v2, s[12:15], s60 offen offset:32")
        A("s_waitcnt vmcnt(0)")

    A(f"{NAME}:")
    A("s_cmp_ge_u32 s2, 256")
    A("s_cbranch_scc1 L_exit")
    if stamps:
        for i in range(8): A(f"s_mov_b32 s{84+2*i}, 0")
    stamp(0)
    A("s_load_dwordx16 s[16:31], s[0:1], 0")
    A("s_load_dwordx8 s[32:39], s[0:1], 64")
    A("v_lshrrev_b32 v2, 6, v0")
    A("v_and_b32 v1, 63, v0")
    A("v_readfirstlane_b32 s3, v2")
    A("s_and_b32 s4, s2, 1"); A("s_lshr_b32 s9, s2, 1"); A("s_and_b32 s10, s9, 2"); A("s_or_b32 s4, s4, s10")
    A("s_and_b32 s9, s9, 1")
    A("s_lshr_b32 s10, s2, 3"); A("s_and_b32 s5, s10, 3"); A("s_lshr_b32 s10, s10, 2")
    A("s_lshl_b32 s6, s10, 1"); A("s_or_b32 s6, s6, s9")
    A("s_lshl_b32 s7, s5, 4"); A("s_add_u32 s7, s7, s6")
    A("s_and_b32 s8, s2, 7"); A("s_mul_i32 s8, s8, 7"); A("s_add_u32 s8, s8, s10")
    A("s_cmp_eq_u32 s10, 7"); A("s_cselect_b32 s8, 64, s8")
    A("v_lshrrev_b32 v3, 3, v1"); A("v_and_b32 v4, 7, v1")
    A("s_waitcnt lgkmcnt(0)")
    srd(12, 38, None, WS_SIZE)
    A("s_cmp_ge_u32 s3, 4")
    A("s_cbranch_scc1 L_service")

    RING = 256 - NG * 16
    Q = RING - 16
    assert Q >= 24
    A("s_lshl_b32 s9, s7, 21"); A("s_lshl_b32 s10, s4, 19"); A("s_add_u32 s10, s10, s9")
    srd(40, 18, "s10", 512 << 10)
    A("s_lshl_b32 s10, s4, 7"); A(f"s_sub_u32 s11, {2<<20}, s10"); A("s_add_u32 s10, s10, s9")
    srd(44, 20, "s10", "s11")
    A("v_lshlrev_b32 v5, 9, v3"); A("v_lshlrev_b32 v6, 4, v4"); A("v_add_u32 v5, v5, v6")
    A("s_lshl_b32 s9, s3, 14"); A("v_add_u32 v6, s9, v5")
    A("s_lshl_b32 s9, s3, 12"); A("v_add_u32 v5, s9, v5")
    ops = []
    def wait_for(tag):
        idx = max(i for i, t in enumerate(ops) if t == tag)
        n = len(ops) - 1 - idx
        A(f"s_waitcnt vmcnt({min(n,63)})")
    landed = set()
    def throttle(n):
        if len(ops) > n:
            A(f"s_waitcnt vmcnt({n})")
            for t in ops[:len(ops) - n]: landed.add(t)
            for t in ops[len(ops) - n:]: landed.discard(t)
    def issue(e):
        r = RING + (e % NG) * 16
        if e < 32: A(f"s_mov_b32 s48, {e*16384}")
        else: A(f"s_mov_b32 s48, {(e-32)*65536}")
        if not perload: throttle(D - 4)
        for j in range(4):
            if perload: throttle(D - 1)
            if e < 32: A(f"buffer_load_dwordx4 v[{r+4*j}:{r+4*j+3}], v5, s[40:43], s48 offen offset:{128*j} nt")
            else: A(f"buffer_load_dwordx4 v[{r+4*j}:{r+4*j+3}], v{6+j}, s[44:47], s48 offen nt")
            ops.append(e)
    def consume_k(c):
        if c not in landed: wait_for(c)
        r = RING + (c % NG) * 16
        for j in range(4): A(f"v_mov_b32 v{12+j}, 0")
        for k in range(4):
            for j in range(4): A(f"v_dot2c_f32_bf16 v{12+j}, v{r+4*j+k}, v{Q+4*j+k}")
        A("v_add_f32 v12, v12, v13"); A("v_add_f32 v14, v14, v15"); A("v_add_f32 v12, v12, v14")
        A("v_add_f32_dpp v12, v12, v12 quad_perm:[1,0,3,2] row_mask:0xf bank_mask:0xf")
        A("v_add_f32_dpp v12, v12, v12 quad_perm:[2,3,0,1] row_mask:0xf bank_mask:0xf")
        A("v_add_f32_dpp v12, v12, v12 row_half_mirror row_mask:0xf bank_mask:0xf")
        dst = 16 + ((c >> 3) & 1)
        A(f"v_cndmask_b32 v{dst}, v{dst}, v12, s[{64+2*(c&7)}:{65+2*(c&7)}]")
        if c % 16 == 15:
            A("v_cvt_pk_bf16_f32 v18, v16, v17")
            A("v_min_u32 v18, -2, v18")
            A(f"buffer_store_dword v18, v10, s[12:15], s49 offen offset:{256*(c>>4)} sc1")
            ops.append("st")
    PM, PA, PP, ACC = Q, Q + 4, 12, Q + 12
    def read_p(c):
        A(f"ds_read_b128 v[{PP+4*(c&1)}:{PP+4*(c&1)+3}], v11 offset:{L_P + c*512}")
    def consume_v(c):
        e = 32 + c
        A("s_waitcnt lgkmcnt(0)")
        if c + 1 < 32: read_p(c + 1)
        if e not in landed: wait_for(e)
        r = RING + (e % NG) * 16
        p = PP + 4 * (c & 1)
        def ands(j):
            for k in range(4): A(f"v_and_b32 v{PA+4*(j&1)+k}, v{p+j}, v{PM+k}")
        def mf(j):
            a = PA + 4 * (j & 1)
            A(f"v_mfma_f32_16x16x32_bf16 v[{ACC}:{ACC+3}], v[{a}:{a+3}], v[{r+4*j}:{r+4*j+3}], v[{ACC}:{ACC+3}]")
        ands(0); ands(1); mf(0); ands(2); mf(1); ands(3); mf(2); mf(3)

    first = (D + 3) // 4
    for e in range(first): issue(e)
    for j in range(1, 4): A(f"v_add_u32 v{6+j}, {4096*j}, v6")
    A("v_lshlrev_b32 v10, 2, v1")
    A("s_lshl_b32 s49, s7, 13"); A("s_lshl_b32 s9, s4, 11"); A("s_add_u32 s49, s49, s9")
    A("s_lshl_b32 s9, s3, 9"); A("s_add_u32 s49, s49, s9"); A(f"s_add_u32 s49, s49, {WS_SX}")
    A("v_lshlrev_b32 v11, 4, v3"); A("s_lshl_b32 s9, s3, 7"); A("v_add_u32 v11, s9, v11")
    for c in range(8):
        A(f"s_mov_b32 s{64+2*c}, {0x01010101 << c:#x}"); A(f"s_mov_b32 s{65+2*c}, {0x01010101 << c:#x}")
    A("v_mov_b32 v16, 0"); A("v_mov_b32 v17, 0")
    A("s_barrier")
    kc = 0; vc = 0
    for e in range(first, 64):
        if e - NG >= 0 and e - NG < 32 and kc <= e - NG:
            if kc == 0:
                A("s_barrier")
                stamp(1)
                A("v_lshlrev_b32 v19, 4, v4")
                for j in range(4): A(f"ds_read_b128 v[{Q+4*j}:{Q+4*j+3}], v19 offset:{L_Q+128*j}")
                A("s_waitcnt lgkmcnt(0)")
            consume_k(kc); kc += 1
        if e >= 32:
            while kc < 32 and kc in landed:
                consume_k(kc); kc += 1
                if kc == 32:
                    stamp(2)
                    A("s_mov_b64 exec, 1"); A(f"v_mov_b32 v19, {L_CNT+4}"); A("v_mov_b32 v18, 1")
                    A("ds_add_u32 v19, v18"); A("s_mov_b64 exec, -1")
                    A("v_and_b32 v19, 1, v1"); A("v_cmp_eq_u32 vcc, 1, v19")
                    A("v_mov_b32 v18, 0xffff"); A("v_mov_b32 v19, 0xffff0000"); A("v_cndmask_b32 v18, v18, v19, vcc")
                    A("v_lshrrev_b32 v19, 1, v4")
                    for k in range(4):
                        A(f"v_cmp_eq_u32 vcc, {k}, v19"); A(f"v_cndmask_b32 v{PM+k}, 0, v18, vcc")
                    for k in range(4): A(f"v_mov_b32 v{ACC+k}, 0")
        if e - NG >= 32:
            assert kc == 32
            if vc == 0:
                A("s_barrier")
                stamp(3)
                read_p(0)
            consume_v(vc); vc += 1
        issue(e)
    while vc < 32:
        consume_v(vc); vc += 1
    stamp(4)
    A("v_lshrrev_b32 v18, 4, v1"); A("v_and_b32 v18, 1, v18"); A("v_lshlrev_b32 v18, 4, v18")
    A("v_lshlrev_b32 v19, 5, v4"); A("v_add_u32 v19, v19, v18")
    A("s_mov_b32 exec_lo, 0x00ff00ff"); A("s_mov_b32 exec_hi, 0xff00ff00")
    for k in range(4): A(f"ds_add_f32 v19, v{ACC+k} offset:{L_OACC+4*k}")
    A("s_waitcnt lgkmcnt(0)")
    A("s_barrier")
    stamp(5)
    write_stamps()
    A("L_exit:")
    A("s_endpgm")

    A("L_service:")
    X = 8
    T = 16
    AV = 40
    MK = 56
    MN = 60
    AS = 64
    DD = 72
    TG = 76
    WQ = 80
    WO = 136
    W2 = 200
    A("s_sub_u32 s3, s3, 4")
    A("s_mul_i32 s9, s5, 896"); srd(40, 16, "s9", 896)
    A("v_lshrrev_b32 v5, 5, v1"); A("v_mul_u32_u24 v5, 14, v5"); A("v_and_b32 v6, 3, v1"); A("v_lshl_add_u32 v5, v6, 2, v5")
    A("v_bfe_u32 v6, v1, 2, 2"); A("v_lshlrev_b32 v6, 1, v6"); A("v_bfe_u32 v7, v1, 4, 1"); A("v_add_u32 v6, v6, v7")
    A("v_lshl_add_u32 v7, v5, 3, v6"); A("v_lshlrev_b32 v7, 1, v7")
    for u in range(2):
        for e in range(4): A(f"buffer_load_ushort v{X+4*u+e}, v7, s[40:43], 0 offen offset:{u*448+e*16}")
    A("v_mov_b32 v2, 0"); A("s_lshl_b32 s50, s7, 7")
    A(f"buffer_load_dwordx2 v[{TG}:{TG+1}], v2, s[12:15], s50 offen sc1")
    A("s_lshl_b32 s9, s6, 9"); A("s_lshl_b32 s10, s4, 7"); A("s_add_u32 s9, s9, s10")
    A(f"s_mul_i32 s10, s3, {112*8192}"); A("s_add_u32 s9, s9, s10"); A(f"s_sub_u32 s10, {448*8192}, s9")
    srd(44, 22, "s9", "s10")
    A(f"v_lshlrev_b32 v{T}, 13, v3"); A(f"v_lshl_add_u32 v{T}, v4, 4, v{T}")
    for t in range(14):
        A(f"s_mov_b32 s48, {t*65536}")
        A(f"buffer_load_dwordx4 v[{WQ+4*t}:{WQ+4*t+3}], v{T}, s[44:47], s48 offen {wpol}")
    A("v_lshlrev_b32 v78, 8, v6"); A("v_lshrrev_b32 v5, 5, v1"); A("v_lshl_add_u32 v78, v5, 6, v78")
    A("v_and_b32 v5, 3, v1"); A("v_lshl_add_u32 v78, v5, 4, v78")
    A("s_lshl_b32 s9, s3, 6"); A("v_lshlrev_b32 v79, 8, v3"); A("v_add_u32 v79, s9, v79")
    for k in range(4): A(f"v_mov_b32 v{T+4+k}, -1")
    for k in range(4): A(f"v_mov_b32 v{T+8+k}, 0")
    A(f"v_lshlrev_b32 v{T+1}, 4, v1")
    A("s_cmp_eq_u32 s3, 0"); A("s_cbranch_scc0 L_f1")
    A(f"ds_write_b128 v{T+1}, v[{T+8}:{T+11}] offset:{L_QACC}")
    A("s_lshl_b32 s9, s7, 13"); A("s_lshl_b32 s10, s4, 11"); A("s_add_u32 s9, s9, s10"); A(f"s_add_u32 s9, s9, {WS_SX}")
    A(f"buffer_store_dwordx4 v[{T+4}:{T+7}], v{T+1}, s[12:15], s9 offen sc1")
    A(f"buffer_store_dwordx4 v[{T+4}:{T+7}], v{T+1}, s[12:15], s9 offen offset:1024 sc1")
    A("s_branch L_f3")
    A("L_f1:")
    A("s_cmp_eq_u32 s3, 1"); A("s_cbranch_scc0 L_f2")
    A("s_and_b32 s10, s8, 63")
    A("s_lshl_b32 s9, s5, 17"); A("s_lshl_b32 s10, s10, 11"); A("s_add_u32 s9, s9, s10"); A(f"s_add_u32 s9, s9, {WS_ZX}")
    A("s_cmp_lt_u32 s8, 56"); A("s_cbranch_scc0 L_f3")
    A(f"buffer_store_dwordx4 v[{T+4}:{T+7}], v{T+1}, s[12:15], s9 offen sc1")
    A(f"buffer_store_dwordx4 v[{T+4}:{T+7}], v{T+1}, s[12:15], s9 offen offset:1024 sc1")
    A("s_branch L_f3")
    A("L_f2:")
    A("s_cmp_eq_u32 s3, 2"); A("s_cbranch_scc0 L_f3")
    A("s_cmp_eq_u32 s8, 0"); A("s_cbranch_scc0 L_f3")
    A("s_lshl_b32 s9, s5, 12"); A(f"s_add_u32 s9, s9, {WS_YA}")
    for k in range(3): A(f"buffer_store_dwordx4 v[{T+8}:{T+11}], v{T+1}, s[12:15], s9 offen offset:{1024*k} sc1")
    A("L_f3:")
    A(f"v_and_b32 v{T}, 1, v1"); A(f"v_cmp_eq_u32 vcc, 1, v{T}")
    A(f"v_mov_b32 v{T+2}, 0xffff"); A(f"v_mov_b32 v{T+3}, 0xffff0000"); A(f"v_cndmask_b32 v{T+2}, v{T+2}, v{T+3}, vcc")
    A(f"v_lshrrev_b32 v{T}, 1, v4")
    for k in range(4):
        A(f"v_cmp_eq_u32 vcc, {k}, v{T}"); A(f"v_cndmask_b32 v{MK+k}, 0, v{T+2}, vcc")
    A(f"v_bfe_u32 v{T}, v1, 1, 3")
    for k in range(4):
        A(f"v_cmp_eq_u32 vcc, {2*k}, v{T}"); A(f"v_cndmask_b32 v{MN+k}, 0, v{T+2}, vcc")
    A("s_mov_b32 s52, 0x77777777"); A("s_mov_b32 s53, 0x77777777")
    A("s_waitcnt lgkmcnt(0)")
    A("s_barrier")

    def wave_sum(v, tmp_s, op="add"):
        A(f"v_{op}_f32_dpp v{v}, v{v}, v{v} quad_perm:[1,0,3,2] row_mask:0xf bank_mask:0xf")
        A(f"v_{op}_f32_dpp v{v}, v{v}, v{v} quad_perm:[2,3,0,1] row_mask:0xf bank_mask:0xf")
        A(f"v_{op}_f32_dpp v{v}, v{v}, v{v} row_half_mirror row_mask:0xf bank_mask:0xf")
        A(f"v_{op}_f32_dpp v{v}, v{v}, v{v} row_mirror row_mask:0xf bank_mask:0xf")
        for i in range(4): A(f"v_readlane_b32 s{tmp_s+i}, v{v}, {16*i}")
        A(f"v_mov_b32 v{v}, s{tmp_s}")
        for i in range(1, 4): A(f"v_{op}_f32 v{v}, s{tmp_s+i}, v{v}")
    def rbf(v, dst=None):
        dst = v if dst is None else dst
        A(f"v_cvt_pk_bf16_f32 v{dst}, v{v}, v{v}"); A(f"v_and_b32 v{dst}, 0xffff0000, v{dst}")
    def layernorm(S, table):
        s = T; d = T + 4
        A(f"v_add_f32 v{s}, v{S}, v{S+1}"); A(f"v_add_f32 v{s+1}, v{S+2}, v{S+3}")
        A(f"v_add_f32 v{s+2}, v{S+4}, v{S+5}"); A(f"v_add_f32 v{s+3}, v{S+6}, v{S+7}")
        A(f"v_add_f32 v{s}, v{s}, v{s+1}"); A(f"v_add_f32 v{s+2}, v{s+2}, v{s+3}"); A(f"v_add_f32 v{s}, v{s}, v{s+2}")
        wave_sum(s, 56)
        A(f"v_mul_f32 v{s}, {1.0/448:.10e}, v{s}")
        for i in range(8): A(f"v_sub_f32 v{d+i}, v{S+i}, v{s}")
        for i in (2, 3, 6, 7): A(f"v_cndmask_b32 v{d+i}, 0, v{d+i}, s[52:53]")
        A(f"v_mul_f32 v{s+1}, v{d}, v{d}"); A(f"v_mul_f32 v{s+2}, v{d+1}, v{d+1}")
        for i in range(2, 8): A(f"v_fmac_f32 v{s+1+(i&1)}, v{d+i}, v{d+i}")
        A(f"v_add_f32 v{s+1}, v{s+1}, v{s+2}")
        rbf(s)
        wave_sum(s + 1, 56)
        for i in range(8): A(f"v_sub_f32 v{d+i}, v{S+i}, v{s}")
        A(f"v_mul_f32 v{s+1}, {1.0/448:.10e}, v{s+1}")
        rbf(s + 1)
        A(f"v_add_f32 v{s+1}, 0x3727c5ac, v{s+1}")
        rbf(s + 1)
        A(f"v_sqrt_f32 v{s+1}, v{s+1}")
        for i in range(8): rbf(d + i)
        rbf(s + 1)
        A(f"v_rcp_f32 v{s+1}, v{s+1}")
        for i in range(8): A(f"v_mul_f32 v{d+i}, v{d+i}, v{s+1}")
        for i in range(8): A(f"v_cvt_pk_bf16_f32 v{d+i}, v{d+i}, v{d+i}")
        A(f"ds_write_b128 v78, v[{d}:{d+3}] offset:{table}")
        A(f"ds_write_b128 v78, v[{d+4}:{d+7}] offset:{table+128}")
        A("s_waitcnt lgkmcnt(0)")
        for i in range(4): A(f"ds_read_b128 v[{AV+4*i}:{AV+4*i+3}], v79 offset:{table+16*i}")
    def gemv_k(W, n):
        def ands(t):
            for k in range(4): A(f"v_and_b32 v{AS+4*(t&1)+k}, v{AV+t}, v{MK+k}")
        for k in range(4): A(f"v_mov_b32 v{DD+k}, 0")
        ands(0)
        for t in range(n):
            if t + 1 < n: ands(t + 1)
            a = AS + 4 * (t & 1)
            A(f"v_mfma_f32_16x16x32_bf16 v[{DD}:{DD+3}], v[{a}:{a+3}], v[{W+4*t}:{W+4*t+3}], v[{DD}:{DD+3}]")
    def gemv_n(W, n, val):
        def ands(t):
            for k in range(4): A(f"v_and_b32_dpp v{AS+4*(t&1)+k}, v{val}, v{MN+k} row_newbcast:{t} row_mask:0xf bank_mask:0xf")
        for k in range(4): A(f"v_mov_b32 v{DD+k}, 0")
        ands(0)
        for t in range(n):
            if t + 1 < n: ands(t + 1)
            a = AS + 4 * (t & 1)
            A(f"v_mfma_f32_16x16x32_bf16 v[{DD}:{DD+3}], v[{a}:{a+3}], v[{W+4*t}:{W+4*t+3}], v[{DD}:{DD+3}]")
    def acc_to_lds(base):
        A(f"v_lshrrev_b32 v{T}, 4, v1"); A(f"v_and_b32 v{T}, 1, v{T}"); A(f"v_lshlrev_b32 v{T}, 4, v{T}")
        A(f"v_lshl_add_u32 v{T}, v4, 5, v{T}")
        A("s_mov_b32 exec_lo, 0x00ff00ff"); A("s_mov_b32 exec_hi, 0xff00ff00")
        for k in range(4): A(f"ds_add_f32 v{T}, v{DD+k} offset:{base+4*k}")
        A("s_mov_b64 exec, -1")
    def spin_tail(lbl, sl=1):
        A(f"s_sleep {sl}"); A("s_sub_u32 s54, s54, 1"); A("s_cmp_lg_u32 s54, 0"); A(f"s_cbranch_scc1 {lbl}")

    A("s_waitcnt vmcnt(15)")
    for i in range(8): A(f"v_lshlrev_b32 v{X+i}, 16, v{X+i}")
    for i in (2, 3, 6, 7): A(f"v_cndmask_b32 v{X+i}, 0, v{X+i}, s[52:53]")
    layernorm(X, L_XN)
    A("s_waitcnt vmcnt(0) lgkmcnt(0)")
    stamp(1)
    gemv_k(WQ, 14)
    acc_to_lds(L_QACC)
    A(f"v_add_co_u32 v{TG}, vcc, 0x7f4a7c15, v{TG}"); A(f"v_mov_b32 v{T+1}, 0x9e3779b9")
    A(f"v_addc_co_u32 v{TG+1}, vcc, v{T+1}, v{TG+1}, vcc")
    A("s_waitcnt lgkmcnt(0)")
    A("s_mov_b64 exec, 1"); A(f"v_mov_b32 v{T}, {L_CNT}"); A(f"v_mov_b32 v{T+1}, 1")
    A(f"ds_add_rtn_u32 v{T+1}, v{T}, v{T+1}")
    A("s_waitcnt lgkmcnt(0)")
    A(f"v_readfirstlane_b32 s9, v{T+1}")
    A("s_mov_b64 exec, -1")
    A("s_lshl_b32 s51, s7, 11"); A(f"s_add_u32 s51, s51, {WS_QX}")
    A(f"v_lshlrev_b32 v{T+2}, 3, v1")
    A("s_cmp_eq_u32 s9, 3"); A("s_cbranch_scc0 L_nopub")
    A(f"v_lshlrev_b32 v{T}, 2, v1")
    A(f"ds_read_b32 v{T+4}, v{T} offset:{L_QACC}")
    A("s_lshl_b32 s9, s4, 9"); A("s_add_u32 s9, s9, s51")
    A("s_waitcnt lgkmcnt(0)")
    A(f"v_cvt_pk_bf16_f32 v{T+4}, v{T+4}, v{T+4}")
    A(f"v_mov_b32 v{T+3}, 0xffff"); A(f"v_bfi_b32 v{T+4}, v{T+3}, v{T+4}, v{TG}")
    A(f"v_mov_b32 v{T+5}, v{TG+1}")
    A(f"buffer_store_dwordx2 v[{T+4}:{T+5}], v{T+2}, s[12:15], s9 offen sc1")
    A("L_nopub:")
    A("s_cmp_eq_u32 s3, 2"); A("s_cbranch_scc0 L_noflag")
    A("s_cmp_eq_u32 s8, 0"); A("s_cbranch_scc0 L_noflag")
    srd(40, 36, None, 256)
    A("s_lshl_b32 s9, s5, 6"); A(f"v_mov_b32 v{T+6}, 1"); A("s_mov_b64 exec, 1")
    A(f"buffer_store_dword v{T+6}, v2, s[40:43], s9 offen sc1")
    A("s_mov_b64 exec, -1")
    A("L_noflag:")
    A("s_lshl_b32 s9, s3, 9"); A("s_add_u32 s9, s9, s51")
    A(f"v_lshrrev_b32 v{T+6}, 16, v{TG}")
    A(f"s_mov_b32 s54, {SPIN}")
    A("L_pollq:")
    A(f"buffer_load_dwordx2 v[{T+4}:{T+5}], v{T+2}, s[12:15], s9 offen sc1")
    A("s_waitcnt vmcnt(0)")
    A(f"v_lshrrev_b32 v{T+7}, 16, v{T+4}")
    A(f"v_cmp_eq_u32 vcc, v{T+7}, v{T+6}"); A(f"v_cmp_eq_u32 s[56:57], v{T+5}, v{TG+1}")
    A("s_and_b64 vcc, vcc, s[56:57]"); A("s_cmp_eq_u64 vcc, -1"); A("s_cbranch_scc1 L_gotq")
    spin_tail("L_pollq")
    A("L_gotq:")
    A(f"v_lshlrev_b32 v{T}, 1, v1"); A("s_lshl_b32 s9, s3, 7"); A(f"v_add_u32 v{T}, s9, v{T}")
    A(f"ds_write_b16 v{T}, v{T+4} offset:{L_Q}")
    stamp(2)
    A("s_lshl_b32 s9, s6, 2"); A("s_add_u32 s9, s9, s4"); A(f"s_mul_i32 s9, s9, {64*896}")
    A(f"s_mul_i32 s10, s3, 224"); A("s_add_u32 s9, s9, s10"); A(f"s_sub_u32 s10, {4096*896}, s9")
    srd(40, 24, "s9", "s10")
    A(f"v_lshrrev_b32 v{T+8}, 4, v1"); A(f"v_mul_u32_u24 v{T+8}, 896, v{T+8}"); A(f"v_and_b32 v{T+9}, 15, v1")
    A(f"v_lshl_add_u32 v{T+8}, v{T+9}, 4, v{T+8}")
    A("s_mov_b32 exec_lo, 0x3fff3fff"); A("s_mov_b32 exec_hi, 0x3fff3fff")
    for t in range(16):
        A(f"s_mov_b32 s48, {t*3584}")
        A(f"buffer_load_dwordx4 v[{WO+4*t}:{WO+4*t+3}], v{T+8}, s[40:43], s48 offen {wpol}")
    A("s_mov_b64 exec, -1")
    A("s_waitcnt lgkmcnt(0)")
    A("s_barrier")
    A("s_cmp_lt_u32 s8, 56"); A("s_cbranch_scc0 L_now13")
    A(f"s_mul_i32 s9, s8, {32*896}"); A(f"s_mul_i32 s10, s3, 224"); A("s_add_u32 s9, s9, s10"); A(f"s_sub_u32 s10, {1792*896}, s9")
    srd(40, 32, "s9", "s10")
    A("s_mov_b32 exec_lo, 0x3fff3fff"); A("s_mov_b32 exec_hi, 0x3fff3fff")
    for t in range(8):
        A(f"s_mov_b32 s48, {t*3584}")
        A(f"buffer_load_dwordx4 v[{W2+4*t}:{W2+4*t+3}], v{T+8}, s[40:43], s48 offen {wpol}")
    A("s_mov_b64 exec, -1")
    A("s_lshl_b32 s9, s8, 6"); A(f"s_mul_i32 s10, s3, {112*3584}"); A("s_add_u32 s9, s9, s10"); A(f"s_sub_u32 s10, {448*3584}, s9")
    srd(40, 28, "s9", "s10"); srd(44, 30, "s9", "s10")
    A(f"v_mul_u32_u24 v{T+8}, 3584, v3"); A(f"v_and_b32 v{T+9}, 3, v1"); A(f"v_lshl_add_u32 v{T+8}, v{T+9}, 4, v{T+8}")
    for half, sr in ((0x0f0f0f0f, 40), (0xf0f0f0f0, 44)):
        A(f"s_mov_b32 exec_lo, {half:#x}"); A(f"s_mov_b32 exec_hi, {half:#x}")
        for t in range(14):
            A(f"s_mov_b32 s48, {t*8*3584}")
            A(f"buffer_load_dwordx4 v[{WQ+4*t}:{WQ+4*t+3}], v{T+8}, s[{sr}:{sr+3}], s48 offen {wpol}")
    A("s_mov_b64 exec, -1")
    A("L_now13:")
    A("s_or_b32 s9, s3, s4"); A("s_cmp_eq_u32 s9, 0"); A("s_cbranch_scc0 L_nobump")
    A("s_mov_b64 exec, 1")
    A(f"buffer_store_dwordx2 v[{TG}:{TG+1}], v2, s[12:15], s50 offen sc1")
    A("s_mov_b64 exec, -1")
    A("L_nobump:")
    srd(40, 36, None, 256)
    A("s_lshl_b32 s9, s5, 6"); A(f"s_mov_b32 s54, {SPIN}")
    A("L_pollz:")
    A(f"buffer_load_dword v{T}, v2, s[40:43], s9 offen sc1")
    A("s_waitcnt vmcnt(0)")
    A(f"v_readfirstlane_b32 s10, v{T}")
    A("s_cmp_eq_u32 s10, 1"); A("s_cbranch_scc1 L_gotz")
    spin_tail("L_pollz", 8)
    A("L_gotz:")
    A(f"v_mov_b32 v{T+1}, {L_CNT}"); A(f"s_mov_b32 s54, {SPIN*8}")
    A("L_pollk:")
    A(f"ds_read_b32 v{T}, v{T+1} offset:4")
    A("s_waitcnt lgkmcnt(0)")
    A(f"v_readfirstlane_b32 s10, v{T}")
    A("s_cmp_eq_u32 s10, 4"); A("s_cbranch_scc1 L_gotk")
    spin_tail("L_pollk", 2)
    A("L_gotk:")
    stamp(3)
    A("s_lshl_b32 s9, s7, 13"); A("s_lshl_b32 s10, s3, 11"); A("s_add_u32 s9, s9, s10"); A(f"s_add_u32 s9, s9, {WS_SX}")
    A(f"v_lshlrev_b32 v{T+1}, 4, v1"); A(f"s_mov_b32 s54, {SPIN}")
    SW = T + 8
    A("L_polls:")
    A(f"buffer_load_dwordx4 v[{SW}:{SW+3}], v{T+1}, s[12:15], s9 offen sc1")
    A(f"buffer_load_dwordx4 v[{SW+4}:{SW+7}], v{T+1}, s[12:15], s9 offen offset:1024 sc1")
    A("s_waitcnt vmcnt(0)")
    A(f"v_max_u32 v{T}, v{SW}, v{SW+1}")
    A(f"v_max3_u32 v{T}, v{T}, v{SW+2}, v{SW+3}"); A(f"v_max3_u32 v{T}, v{T}, v{SW+4}, v{SW+5}"); A(f"v_max3_u32 v{T}, v{T}, v{SW+6}, v{SW+7}")
    A(f"v_cmp_eq_u32 vcc, -1, v{T}")
    A("s_cmp_eq_u64 vcc, 0"); A("s_cbranch_scc1 L_gots")
    spin_tail("L_polls", 2)
    A("L_gots:")
    stamp(4)
    for i in range(8):
        A(f"v_lshlrev_b32 v{AV+i}, 16, v{SW+i}"); A(f"v_and_b32 v{AV+8+i}, 0xffff0000, v{SW+i}")
    A(f"v_max_f32 v{T}, v{AV}, v{AV+1}")
    for i in range(2, 16, 2): A(f"v_max3_f32 v{T}, v{T}, v{AV+i}, v{AV+i+1}")
    wave_sum(T, 56, "max")
    CE = 1.4426950408889634 / 16
    A(f"s_mov_b32 s55, {CE:.10e}".replace(f"{CE:.10e}", hex(f2u(CE))))
    for i in range(16): A(f"v_sub_f32 v{AV+i}, v{AV+i}, v{T}")
    for i in range(16): A(f"v_mul_f32 v{AV+i}, s55, v{AV+i}")
    for i in range(16): A(f"v_exp_f32 v{AV+i}, v{AV+i}")
    A(f"v_add_f32 v{T+1}, v{AV}, v{AV+1}"); A(f"v_add_f32 v{T+2}, v{AV+2}, v{AV+3}")
    for i in range(4, 16): A(f"v_add_f32 v{T+1+(i&1)}, v{T+1+(i&1)}, v{AV+i}")
    A(f"v_add_f32 v{T+1}, v{T+1}, v{T+2}")
    wave_sum(T + 1, 56)
    A("s_lshl_b32 s9, s3, 3"); A(f"v_mov_b32 v{T+2}, s9"); A("s_mov_b64 exec, 1")
    A(f"ds_write_b64 v{T+2}, v[{T}:{T+1}] offset:{L_CNT+16}")
    A(f"v_mov_b32 v{T+2}, {L_CNT}"); A(f"v_mov_b32 v{T+3}, 1")
    A("s_waitcnt lgkmcnt(0)")
    A(f"ds_add_u32 v{T+2}, v{T+3} offset:8")
    A("s_mov_b64 exec, -1")
    A(f"v_mov_b32 v{T+2}, {L_CNT}"); A(f"s_mov_b32 s54, {SPIN*8}")
    A("L_pollm:")
    A(f"ds_read_b32 v{T+3}, v{T+2} offset:8")
    A("s_waitcnt lgkmcnt(0)")
    A(f"v_readfirstlane_b32 s10, v{T+3}")
    A("s_cmp_eq_u32 s10, 4"); A("s_cbranch_scc1 L_gotm")
    spin_tail("L_pollm", 1)
    A("L_gotm:")
    A(f"ds_read_b128 v[{SW}:{SW+3}], v{T+2} offset:16"); A(f"ds_read_b128 v[{SW+4}:{SW+7}], v{T+2} offset:32")
    A("s_waitcnt lgkmcnt(0)")
    A(f"v_max_f32 v{T+3}, v{SW}, v{SW+2}"); A(f"v_max3_f32 v{T+3}, v{T+3}, v{SW+4}, v{SW+6}")
    for i in range(4): A(f"v_sub_f32 v{SW+2*i}, v{SW+2*i}, v{T+3}")
    A(f"v_sub_f32 v{T}, v{T}, v{T+3}")
    for i in range(4): A(f"v_mul_f32 v{SW+2*i}, s55, v{SW+2*i}")
    A(f"v_mul_f32 v{T}, s55, v{T}")
    for i in range(4): A(f"v_exp_f32 v{SW+2*i}, v{SW+2*i}")
    A(f"v_exp_f32 v{T}, v{T}")
    A(f"v_mul_f32 v{T+1}, v{SW}, v{SW+1}")
    for i in range(1, 4): A(f"v_fmac_f32 v{T+1}, v{SW+2*i}, v{SW+2*i+1}")
    A(f"v_rcp_f32 v{T+1}, v{T+1}")
    A(f"v_mul_f32 v{T}, v{T}, v{T+1}")
    A(f"v_bfe_u32 v{T+2}, v1, 4, 1"); A(f"v_lshlrev_b32 v{T+2}, 11, v{T+2}")
    A(f"v_and_b32 v{T+3}, 1, v1"); A(f"v_lshl_add_u32 v{T+2}, v{T+3}, 9, v{T+2}")
    A(f"v_bfe_u32 v{T+3}, v1, 1, 3"); A(f"v_lshl_add_u32 v{T+2}, v{T+3}, 4, v{T+2}")
    A(f"v_lshrrev_b32 v{T+3}, 5, v1"); A(f"v_lshl_add_u32 v{T+2}, v{T+3}, 2, v{T+2}")
    A("s_lshl_b32 s9, s3, 12"); A(f"v_add_u32 v{T+2}, s9, v{T+2}")
    for i in range(16): A(f"v_mul_f32 v{AV+i}, v{AV+i}, v{T}")
    for i in range(16): A(f"v_cvt_pk_bf16_f32 v{AV+i}, v{AV+i}, v{AV+i}")
    for i in range(16):
        lohi = i >> 3; u = (i >> 2) & 1; e = i & 3
        A(f"ds_write_b32 v{T+2}, v{AV+i} offset:{L_P + e*128 + lohi*1024 + u*8}")
    A("s_waitcnt lgkmcnt(0)")
    A("s_barrier")
    stamp(5)
    A(f"v_and_b32 v{T+1}, 15, v1"); A(f"v_lshrrev_b32 v{T+2}, 4, v1")
    A(f"v_lshlrev_b32 v5, 4, v{T+1}"); A(f"v_lshl_add_u32 v5, v{T+2}, 2, v5")
    A("v_lshlrev_b32 v6, 2, v1")
    A("s_lshl_b32 s50, s5, 12"); A(f"s_add_u32 s50, s50, {WS_YA}")
    A("s_lshl_b32 s9, s3, 9"); A("s_add_u32 s51, s50, s9")
    A("s_waitcnt vmcnt(0)")
    A("s_barrier")
    stamp(6)
    A(f"ds_read_b32 v{T}, v5 offset:{L_OACC}")
    A("s_waitcnt lgkmcnt(0)")
    A(f"v_cvt_pk_bf16_f32 v{T}, v{T}, v{T}")
    gemv_n(WO, 16, T)
    A("s_mov_b32 exec_lo, 0x3fff3fff"); A("s_mov_b32 exec_hi, 0x3fff3fff")
    A(f"buffer_atomic_add_f32 v{DD}, v6, s[12:15], s51 offen sc1")
    A(f"buffer_atomic_add_f32 v{DD+1}, v6, s[12:15], s51 offen offset:256 sc1")
    A("s_mov_b64 exec, -1")
    A("s_waitcnt vmcnt(0)")
    A("s_barrier")
    A("s_cmp_eq_u32 s3, 0"); A("s_cbranch_scc0 L_nocnt")
    A(f"v_lshlrev_b32 v{T+1}, 7, v1"); A(f"v_mov_b32 v{T+2}, 1"); A("s_mov_b64 exec, 0xff")
    A(f"buffer_atomic_add v{T+2}, v{T+1}, s[12:15], s50 offen offset:2048 sc1")
    A("s_mov_b64 exec, -1")
    A("L_nocnt:")
    A("s_cmp_lt_u32 s8, 56"); A("s_cbranch_scc0 L_done")
    A("s_cmp_eq_u32 s3, 0"); A("s_cbranch_scc0 L_goty")
    A("s_and_b32 s9, s8, 7"); A("s_lshl_b32 s9, s9, 7"); A("s_add_u32 s9, s9, s50"); A(f"s_mov_b32 s54, {SPIN}")
    A("L_polly:")
    A(f"buffer_load_dword v{T}, v2, s[12:15], s9 offen offset:2048 sc1")
    A("s_waitcnt vmcnt(0)")
    A(f"v_readfirstlane_b32 s10, v{T}")
    A("s_cmp_eq_u32 s10, 64"); A("s_cbranch_scc1 L_goty")
    spin_tail("L_polly", 1)
    A("L_goty:")
    A("s_barrier")
    H = T + 16
    A(f"v_lshlrev_b32 v{T+1}, 4, v1")
    A(f"buffer_load_dwordx4 v[{H}:{H+3}], v{T+1}, s[12:15], s50 offen sc1")
    A(f"buffer_load_dwordx4 v[{H+4}:{H+7}], v{T+1}, s[12:15], s50 offen offset:1024 sc1")
    A("s_waitcnt vmcnt(0)")
    stamp(7)
    for i in range(8): rbf(H + i)
    for i in range(8): A(f"v_add_f32 v{H+i}, v{H+i}, v{X+i}")
    for i in range(8): rbf(H + i)
    for i in (2, 3, 6, 7): A(f"v_cndmask_b32 v{H+i}, 0, v{H+i}, s[52:53]")
    A(f"ds_write_b128 v78, v[{H}:{H+3}] offset:{L_H}")
    A(f"ds_write_b128 v78, v[{H+4}:{H+7}] offset:{L_H+128}")
    layernorm(H, L_HN)
    A("s_waitcnt lgkmcnt(0)")
    gemv_k(WQ, 14)
    acc_to_lds(L_GU)
    A("s_waitcnt lgkmcnt(0)")
    A("s_barrier")
    A(f"v_and_b32 v{T+1}, 0x7f, v5")
    A(f"ds_read_b32 v{T+2}, v{T+1} offset:{L_GU}"); A(f"ds_read_b32 v{T+3}, v{T+1} offset:{L_GU+128}")
    A("s_waitcnt lgkmcnt(0)")
    rbf(T + 2); rbf(T + 3)
    A(f"v_mul_f32 v{T}, {hex(f2u(-1.4426950408889634))}, v{T+2}")
    A(f"v_exp_f32 v{T}, v{T}")
    A(f"v_add_f32 v{T}, 1.0, v{T}")
    A(f"v_rcp_f32 v{T}, v{T}")
    A(f"v_mul_f32 v{T}, v{T}, v{T+2}")
    rbf(T)
    A(f"v_mul_f32 v{T}, v{T}, v{T+3}")
    A(f"v_cvt_pk_bf16_f32 v{T}, v{T}, v{T}")
    gemv_n(W2, 8, T)
    A(f"v_and_b32 v{T+1}, 15, v1"); A(f"v_lshrrev_b32 v{T+2}, 4, v1")
    A(f"v_lshlrev_b32 v{T+1}, 11, v{T+1}"); A(f"v_lshl_add_u32 v{T+1}, v{T+2}, 3, v{T+1}")
    A("s_lshl_b32 s50, s5, 17"); A(f"s_add_u32 s50, s50, {WS_ZX}")
    A(f"s_mul_i32 s9, s3, {14*2048}"); A("s_lshl_b32 s10, s8, 5"); A("s_add_u32 s9, s9, s10"); A("s_add_u32 s9, s9, s50")
    A(f"v_min_u32 v{DD}, -2, v{DD}"); A(f"v_min_u32 v{DD+1}, -2, v{DD+1}")
    A("s_mov_b32 exec_lo, 0x3fff3fff"); A("s_mov_b32 exec_hi, 0x3fff3fff")
    A(f"buffer_store_dwordx2 v[{DD}:{DD+1}], v{T+1}, s[12:15], s9 offen sc1")
    A("s_mov_b64 exec, -1")
    A("s_cmp_eq_u32 s3, 0"); A("s_cbranch_scc0 L_done")
    A("s_mul_i32 s9, s8, 4682"); A("s_lshr_b32 s9, s9, 16")
    A("s_mul_i32 s10, s9, 14"); A("s_sub_u32 s10, s8, s10")
    A("s_lshl_b32 s9, s9, 6"); A("s_lshl_b32 s10, s10, 2"); A("s_add_u32 s9, s9, s10")
    A(f"v_and_b32 v{T+1}, 1, v1"); A(f"v_lshlrev_b32 v{T+1}, 10, v{T+1}"); A(f"v_add_u32 v{T+1}, s9, v{T+1}")
    for r in range(4): A(f"ds_read_b32 v{H+r}, v{T+1} offset:{L_H+256*r}")
    A("s_lshl_b32 s9, s8, 11"); A("s_add_u32 s9, s9, s50")
    A(f"v_lshlrev_b32 v{T+1}, 4, v1"); A(f"s_mov_b32 s54, {SPIN}")
    for k in range(4): A(f"v_mov_b32 v{SW+4+k}, 0")
    A("L_pollo:")
    A(f"buffer_load_dwordx4 v[{SW}:{SW+3}], v{T+1}, s[12:15], s9 offen sc1")
    A("s_mov_b32 exec_hi, 0xffff")
    A(f"buffer_load_dwordx4 v[{SW+4}:{SW+7}], v{T+1}, s[12:15], s9 offen offset:1024 sc1")
    A("s_mov_b32 exec_hi, -1")
    A("s_waitcnt vmcnt(0)")
    A(f"v_max_u32 v{T}, v{SW}, v{SW+1}")
    A(f"v_max3_u32 v{T}, v{T}, v{SW+2}, v{SW+3}"); A(f"v_max3_u32 v{T}, v{T}, v{SW+4}, v{SW+5}"); A(f"v_max3_u32 v{T}, v{T}, v{SW+6}, v{SW+7}")
    A(f"v_cmp_eq_u32 vcc, -1, v{T}")
    A("s_cmp_eq_u64 vcc, 0"); A("s_cbranch_scc1 L_goto")
    spin_tail("L_pollo", 1)
    A("L_goto:")
    for k in range(4): A(f"v_add_f32 v{SW+k}, v{SW+k}, v{SW+4+k}")
    for rot in (8, 4, 2):
        for k in range(4): A(f"v_add_f32_dpp v{SW+k}, v{SW+k}, v{SW+k} row_ror:{rot} row_mask:0xf bank_mask:0xf")
    for k in range(4): A(f"v_mov_b32 v{SW+4+k}, v{SW+k}")
    for k in range(4): A(f"v_permlane16_swap_b32 v{SW+k}, v{SW+4+k}")
    for k in range(4): A(f"v_add_f32 v{SW+k}, v{SW+k}, v{SW+4+k}")
    for k in range(4): A(f"v_mov_b32 v{SW+4+k}, v{SW+k}")
    for k in range(4): A(f"v_permlane32_swap_b32 v{SW+k}, v{SW+4+k}")
    for k in range(4): A(f"v_add_f32 v{SW+k}, v{SW+k}, v{SW+4+k}")
    for k in range(4): rbf(SW + k)
    A("s_waitcnt lgkmcnt(0)")
    for k in range(4): A(f"v_add_f32 v{SW+k}, v{SW+k}, v{H+k}")
    A(f"v_cvt_pk_bf16_f32 v{T+2}, v{SW}, v{SW+1}"); A(f"v_cvt_pk_bf16_f32 v{T+3}, v{SW+2}, v{SW+3}")
    srd(40, 34, None, 3584)
    A("s_mul_i32 s9, s5, 896"); A("s_lshl_b32 s10, s8, 4"); A("s_add_u32 s9, s9, s10")
    A(f"v_lshlrev_b32 v{T+1}, 3, v1"); A("s_mov_b64 exec, 3")
    A(f"buffer_store_dwordx2 v[{T+2}:{T+3}], v{T+1}, s[40:43], s9 offen")
    A("s_mov_b64 exec, -1")
    A("L_done:")
    if stamps:
        A("s_waitcnt vmcnt(0)")
        A("s_memrealtime s[84:85]") if False else None
        A("s_add_u32 s3, s3, 4")
        A("s_memrealtime s[86:87]")
    write_stamps(True)
    A("s_endpgm")

    body = A.finish()
    out = HDR + f"; @launch grid=(256,1,1) block=(512,1,1) lds={LDS_SIZE}\n"
    out += f'.amdgcn_target "amdgcn-amd-amdhsa--gfx950"\n.text\n.globl {NAME}\n.p2align 8\n.type {NAME},@function\n'
    out += body
    out += f'''.section .rodata,"a"
.p2align 6
.amdhsa_kernel {NAME}
  .amdhsa_next_free_vgpr 256
  .amdhsa_next_free_sgpr 102
  .amdhsa_accum_offset 256
  .amdhsa_group_segment_fixed_size 0
  .amdhsa_kernarg_size 96
  .amdhsa_user_sgpr_count 2
  .amdhsa_user_sgpr_kernarg_segment_ptr 1
  .amdhsa_system_sgpr_workgroup_id_x 1
.end_amdhsa_kernel
'''
    return out

import struct
def f2u(f): return struct.unpack("<I", struct.pack("<f", f))[0]

if __name__ == "__main__":
    kw = eval("dict(" + (sys.argv[2] if len(sys.argv) > 2 else "") + ")")
    open(sys.argv[1], "w").write(gen(**kw))
```

```python
import sys, os
sys.path.insert(0, os.path.dirname(os.path.abspath(__file__)))
from asmlib import Asm

NAME = "sequential_preLN__mha_block_cached__glu_gated_swiglu__decode_kernel"
HDR = open(os.path.join(os.path.dirname(os.path.abspath(__file__)), "header.txt")).read()

WS_EP, WS_QX, WS_SX, WS_YA, WS_ZX, WS_TS = 0x0, 0x10000, 0x40000, 0x100000, 0x200000, 0x300000
WS_SIZE = 0x400000
L_P, L_Q, L_CNT, L_XN, L_ACC, L_H, L_HN, L_ACT, L_W = 0x0, 0x4000, 0x4200, 0x4800, 0x5000, 0x5800, 0x7800, 0x9000, 0xa000
LDS_SIZE = L_W + 448 * 256
NROLE = 28
DBG_TICKET = 16
SPIN = 200000

def gen(NG=13, D=8, stamps=False, wpol="", perload=True, dbg=False, skipw=0, nob1=False, nob2=False, TR=None, D0=None, R=4, fst=False, skipf=False, fpol='', opol='', qpol=''):
    if dbg: stamps = True
    A = Asm()
    nstamp = [0]
    def stamp(i):
        if stamps:
            A(f"s_memrealtime s[{84+2*i}:{85+2*i}]")
    def srd(d, base, off, size):
        if off is None:
            A(f"s_mov_b32 s{d}, s{base}"); A(f"s_mov_b32 s{d+1}, s{base+1}")
        else:
            A(f"s_add_u32 s{d}, s{base}, {off}"); A(f"s_addc_u32 s{d+1}, s{base+1}, 0")
        A(f"s_mov_b32 s{d+2}, {size}"); A(f"s_mov_b32 s{d+3}, 0x20000")
    def write_stamps(svc=False):
        if not stamps: return
        if dbg:
            if not svc: return
            A("s_cmp_eq_u32 s3, 4"); A("s_cbranch_scc0 L_exit")
            A("s_waitcnt lgkmcnt(0)")
            A("s_mov_b64 exec, 1")
            srd(40, 36, None, 256)
            A("v_mov_b32 v2, 0")
            A("s_not_b32 s84, s84")
            for i in range(8): A(f"v_mov_b32 v{8+i}, s{84+2*i}")
            for i in range(8):
                if not svc and i > 5: continue
                A(f"buffer_atomic_umax v{8+i}, v2, s[40:43], 0 offen offset:{(8+i)*4 if svc else (1+i)*4} sc1")
            A("s_waitcnt vmcnt(0)")
            return
        A("s_waitcnt lgkmcnt(0)")
        A("s_mov_b64 exec, 1")
        A("s_lshl_b32 s60, s2, 3"); A("s_add_u32 s60, s60, s3"); A("s_lshl_b32 s60, s60, 6"); A(f"s_add_u32 s60, s60, {WS_TS}")
        A("v_mov_b32 v2, 0")
        for i in range(8):
            A(f"v_mov_b32 v{8+i}, s{84+2*i}")
        A("s_getreg_b32 s61, hwreg(HW_REG_XCC_ID)")
        A("v_mov_b32 v16, s61")
        A("buffer_store_dwordx4 v[8:11], v2, s[12:15], s60 offen")
        A("buffer_store_dwordx4 v[12:15], v2, s[12:15], s60 offen offset:16")
        A("buffer_store_dword v16, v2, s[12:15], s60 offen offset:32")
        A("s_waitcnt vmcnt(0)")

    A(f"{NAME}:")
    A("s_cmp_ge_u32 s2, 256")
    A("s_cbranch_scc1 L_exit")
    if stamps:
        for i in range(8): A(f"s_mov_b32 s{84+2*i}, 0")
    stamp(0)
    A("s_load_dwordx16 s[16:31], s[0:1], 0")
    A("s_load_dwordx8 s[32:39], s[0:1], 64")
    A("v_lshrrev_b32 v2, 6, v0")
    A("v_and_b32 v1, 63, v0")
    A("v_readfirstlane_b32 s3, v2")
    A("s_and_b32 s4, s2, 1"); A("s_lshr_b32 s9, s2, 1"); A("s_and_b32 s10, s9, 2"); A("s_or_b32 s4, s4, s10")
    A("s_and_b32 s9, s9, 1")
    A("s_lshr_b32 s10, s2, 3"); A("s_and_b32 s5, s10, 3"); A("s_lshr_b32 s10, s10, 2")
    A("s_lshl_b32 s6, s10, 1"); A("s_or_b32 s6, s6, s9")
    A("s_lshl_b32 s7, s5, 4"); A("s_add_u32 s7, s7, s6")
    A("s_andn2_b32 s8, s2, 24")
    A("s_mov_b32 s62, s3")
    A("v_lshrrev_b32 v3, 3, v1"); A("v_and_b32 v4, 7, v1")
    A("s_waitcnt lgkmcnt(0)")
    srd(12, 38, None, WS_SIZE)
    A("s_cmp_ge_u32 s3, 4")
    A("s_cbranch_scc1 L_service")

    RING = 256 - NG * 16
    Q = RING - 16
    assert Q >= 24
    A("s_lshl_b32 s9, s7, 21"); A("s_lshl_b32 s10, s4, 19"); A("s_add_u32 s10, s10, s9")
    srd(40, 18, "s10", 512 << 10)
    A("s_lshl_b32 s10, s4, 7"); A(f"s_sub_u32 s11, {2<<20}, s10"); A("s_add_u32 s10, s10, s9")
    srd(44, 20, "s10", "s11")
    A("v_lshlrev_b32 v5, 9, v3"); A("v_lshlrev_b32 v6, 4, v4"); A("v_add_u32 v5, v5, v6")
    A("s_lshl_b32 s9, s3, 14"); A("v_add_u32 v6, s9, v5")
    A("s_lshl_b32 s9, s3, 12"); A("v_add_u32 v5, s9, v5")
    def acc_addr(v, t):
        A(f"v_bfe_u32 v{t}, v1, 4, 1"); A(f"v_lshlrev_b32 v{t}, 4, v{t}"); A(f"v_lshl_add_u32 v{t}, v4, 5, v{t}")
        A(f"v_lshrrev_b32 v{v}, 5, v1"); A(f"v_lshl_add_u32 v{v}, v{v}, 8, v{t}")
        A("s_lshl_b32 s9, s3, 9"); A(f"v_add_u32 v{v}, s9, v{v}")
    def acc_sum(dst, addr):
        for i in range(4): A(f"ds_read2st64_b32 v[{dst+2*i}:{dst+2*i+1}], v{addr} offset0:{L_ACC//256+2*i} offset1:{L_ACC//256+2*i+1}")
        A("s_waitcnt lgkmcnt(0)")
        for i in range(4): A(f"v_add_f32 v{dst+i}, v{dst+i}, v{dst+4+i}")
        A(f"v_add_f32 v{dst}, v{dst}, v{dst+1}"); A(f"v_add_f32 v{dst+2}, v{dst+2}, v{dst+3}"); A(f"v_add_f32 v{dst}, v{dst}, v{dst+2}")
    ops = []
    def wait_for(tag):
        idx = max(i for i, t in enumerate(ops) if t == tag)
        n = len(ops) - 1 - idx
        A(f"s_waitcnt vmcnt({min(n,63)})")
    landed = set()
    def throttle(n):
        if len(ops) > n:
            A(f"s_waitcnt vmcnt({n})")
            for t in ops[:len(ops) - n]: landed.add(t)
            for t in ops[len(ops) - n:]: landed.discard(t)
    def issue(e):
        r = RING + (e % NG) * 16
        if e < 32: A(f"s_mov_b32 s48, {e*16384}")
        else: A(f"s_mov_b32 s48, {(e-32)*65536}")
        if not perload: throttle(D - 4)
        for j in range(4):
            if perload: throttle((D0 if (D0 and e < NG) else D) - 1)
            if e < 32: A(f"buffer_load_dwordx4 v[{r+4*j}:{r+4*j+3}], v5, s[40:43], s48 offen offset:{128*j} nt")
            else: A(f"buffer_load_dwordx4 v[{r+4*j}:{r+4*j+3}], v{6+j}, s[44:47], s48 offen nt")
            ops.append(e)
    def consume_k(c):
        if c not in landed: wait_for(c)
        r = RING + (c % NG) * 16
        for j in range(4): A(f"v_mov_b32 v{12+j}, 0")
        for k in range(4):
            for j in range(4): A(f"v_dot2c_f32_bf16 v{12+j}, v{r+4*j+k}, v{Q+4*j+k}")
        A("v_add_f32 v12, v12, v13"); A("v_add_f32 v14, v14, v15"); A("v_add_f32 v12, v12, v14")
        A("v_add_f32_dpp v12, v12, v12 quad_perm:[1,0,3,2] row_mask:0xf bank_mask:0xf")
        A("v_add_f32_dpp v12, v12, v12 quad_perm:[2,3,0,1] row_mask:0xf bank_mask:0xf")
        A("v_add_f32_dpp v12, v12, v12 row_half_mirror row_mask:0xf bank_mask:0xf")
        dst = 16 + ((c >> 3) & 1)
        A(f"v_cndmask_b32 v{dst}, v{dst}, v12, s[{64+2*(c&7)}:{65+2*(c&7)}]")
        if c % 16 == 15:
            A("v_cvt_pk_bf16_f32 v18, v16, v17")
            A("v_min_u32 v18, -2, v18")
            A(f"buffer_store_dword v18, v10, s[12:15], s49 offen offset:{256*(c>>4)} sc1")
            ops.append("st")
    PM, PA, PP, ACC = Q, Q + 4, 12, Q + 12
    def read_p(c):
        A(f"ds_read_b128 v[{PP+4*(c&1)}:{PP+4*(c&1)+3}], v11 offset:{L_P + c*512}")
    def consume_v(c):
        e = 32 + c
        A("s_waitcnt lgkmcnt(0)")
        if c + 1 < 32: read_p(c + 1)
        if e not in landed: wait_for(e)
        r = RING + (e % NG) * 16
        p = PP + 4 * (c & 1)
        def ands(j):
            for k in range(4): A(f"v_and_b32 v{PA+4*(j&1)+k}, v{p+j}, v{PM+k}")
        def mf(j):
            a = PA + 4 * (j & 1)
            A(f"v_mfma_f32_16x16x32_bf16 v[{ACC}:{ACC+3}], v[{a}:{a+3}], v[{r+4*j}:{r+4*j+3}], v[{ACC}:{ACC+3}]")
        ands(0); ands(1); mf(0); ands(2); mf(1); ands(3); mf(2); mf(3)

    first = ((D0 or D) + 3) // 4
    for e in range(first): issue(e)
    for j in range(1, 4): A(f"v_add_u32 v{6+j}, {4096*j}, v6")
    A("v_lshlrev_b32 v10, 2, v1")
    A("s_lshl_b32 s49, s7, 13"); A("s_lshl_b32 s9, s4, 11"); A("s_add_u32 s49, s49, s9")
    A("s_lshl_b32 s9, s3, 9"); A("s_add_u32 s49, s49, s9"); A(f"s_add_u32 s49, s49, {WS_SX}")
    A("v_lshlrev_b32 v11, 4, v3"); A("s_lshl_b32 s9, s3, 7"); A("v_add_u32 v11, s9, v11")
    for c in range(8):
        A(f"s_mov_b32 s{64+2*c}, {0x01010101 << c:#x}"); A(f"s_mov_b32 s{65+2*c}, {0x01010101 << c:#x}")
    A("v_mov_b32 v16, 0"); A("v_mov_b32 v17, 0")
    A("s_barrier")
    kc = 0; vc = 0
    for e in range(first, 64):
        if e - NG >= 0 and e - NG < 32 and kc <= e - NG:
            if kc == 0:
                if not nob1: A("s_barrier")
                stamp(1)
                A("v_lshlrev_b32 v19, 4, v4")
                for j in range(4): A(f"ds_read_b128 v[{Q+4*j}:{Q+4*j+3}], v19 offset:{L_Q+128*j}")
                A("s_waitcnt lgkmcnt(0)")
            consume_k(kc); kc += 1
        if e >= 32:
            while kc < 32 and kc in landed:
                consume_k(kc); kc += 1
                if kc == 32:
                    stamp(2)
                    A("s_mov_b64 exec, 1"); A(f"v_mov_b32 v19, {L_CNT+4}"); A("v_mov_b32 v18, 1")
                    A("ds_add_u32 v19, v18"); A("s_mov_b64 exec, -1")
                    A("v_and_b32 v19, 1, v1"); A("v_cmp_eq_u32 vcc, 1, v19")
                    A("v_mov_b32 v18, 0xffff"); A("v_mov_b32 v19, 0xffff0000"); A("v_cndmask_b32 v18, v18, v19, vcc")
                    A("v_lshrrev_b32 v19, 1, v4")
                    for k in range(4):
                        A(f"v_cmp_eq_u32 vcc, {k}, v19"); A(f"v_cndmask_b32 v{PM+k}, 0, v18, vcc")
                    for k in range(4): A(f"v_mov_b32 v{ACC+k}, 0")
                    acc_addr(10, 18)
        if e - NG >= 32:
            assert kc == 32
            if vc == 0:
                if not nob2: A("s_barrier")
                stamp(3)
                read_p(0)
            consume_v(vc); vc += 1
        issue(e)
    while vc < 32:
        consume_v(vc); vc += 1
    stamp(4)
    A("s_mov_b32 exec_lo, 0x00ff00ff"); A("s_mov_b32 exec_hi, 0xff00ff00")
    A(f"ds_write_b128 v10, v[{ACC}:{ACC+3}] offset:{L_ACC}")
    A("s_waitcnt lgkmcnt(0)")
    A("s_mov_b64 exec, -1")
    A("s_barrier")
    stamp(5)
    A(f"v_mov_b32 v19, {L_CNT}")
    A("ds_read_b32 v18, v19 offset:12")
    A("s_waitcnt lgkmcnt(0)")
    A("v_readfirstlane_b32 s63, v18")
    A("s_sub_u32 s63, s63, 1")
    A(f"s_cmp_lt_u32 s63, {NROLE}"); A("s_cbranch_scc1 L_sffn")
    write_stamps()
    A("L_exit:")
    A("s_endpgm")
    A("L_sffn:")
    X = 8
    T = 16
    AV = 40
    MK = 56
    MN = 60
    AS = 64
    DD = 72
    TG = 76
    WQ = 80
    WO = 136
    W3S = 200
    W2F, DQ, AD = 136, 168, 184
    def tr_w13():
        a = T + 12
        A(f"v_lshrrev_b32 v{a+2}, 4, v1"); A(f"v_bfe_u32 v{a+3}, v1, 2, 2")
        A(f"v_lshlrev_b32 v{a}, 9, v{a+2}"); A(f"v_lshl_add_u32 v{a}, v{a+3}, 11, v{a}")
        A(f"v_and_b32 v{a+2}, 1, v{a+2}"); A(f"v_lshl_add_u32 v{a+3}, v{a+2}, 2, v{a+3}")
        A(f"v_and_b32 v{a+2}, 2, v1"); A(f"v_lshl_add_u32 v{a+3}, v{a+2}, 2, v{a+3}")
        A(f"v_add_u32 v{a+3}, s62, v{a+3}"); A(f"v_and_b32 v{a+3}, 15, v{a+3}")
        A(f"v_lshl_add_u32 v{a}, v{a+3}, 4, v{a}")
        A(f"v_and_b32 v{a+2}, 1, v1"); A(f"v_lshl_add_u32 v{a}, v{a+2}, 3, v{a}")
        A(f"v_add_u32 v{a}, {L_W}, v{a}"); A(f"v_add_u32 v{a+1}, 0x10000, v{a}")
        for t in range(14):
            for h in range(2):
                A(f"ds_read_b64_tr_b16 v[{WQ+4*t+2*h}:{WQ+4*t+2*h+1}], v{a+(t>>3)} offset:{(t&7)*8192+h*256}")
    tr_w13()
    A("s_waitcnt lgkmcnt(0)")
    A("s_barrier")
    A("s_branch L_ffn")

    A("L_service:")
    A("s_sub_u32 s3, s3, 4")
    A("s_mul_i32 s9, s5, 896"); srd(40, 16, "s9", 896)
    A("v_lshrrev_b32 v5, 5, v1"); A("v_mul_u32_u24 v5, 14, v5"); A("v_and_b32 v6, 3, v1"); A("v_lshl_add_u32 v5, v6, 2, v5")
    A("v_bfe_u32 v6, v1, 2, 2"); A("v_lshlrev_b32 v6, 1, v6"); A("v_bfe_u32 v7, v1, 4, 1"); A("v_add_u32 v6, v6, v7")
    A("v_lshl_add_u32 v7, v5, 3, v6"); A("v_lshlrev_b32 v7, 1, v7")
    for u in range(2):
        for e in range(4): A(f"buffer_load_ushort v{X+4*u+e}, v7, s[40:43], 0 offen offset:{u*448+e*16}")
    A("v_mov_b32 v2, 0"); A("s_lshl_b32 s50, s7, 7")
    A(f"buffer_load_dwordx2 v[{TG}:{TG+1}], v2, s[12:15], s50 offen sc1")
    A("s_lshl_b32 s9, s6, 9"); A("s_lshl_b32 s10, s4, 7"); A("s_add_u32 s9, s9, s10")
    A(f"s_mul_i32 s10, s3, {112*8192}"); A("s_add_u32 s9, s9, s10"); A(f"s_sub_u32 s10, {448*8192}, s9")
    srd(44, 22, "s9", "s10")
    A(f"v_lshlrev_b32 v{T}, 13, v3"); A(f"v_lshl_add_u32 v{T}, v4, 4, v{T}")
    for t in range(14 if skipw < 2 else 0):
        A(f"s_mov_b32 s48, {t*65536}")
        A(f"buffer_load_dwordx4 v[{WQ+4*t}:{WQ+4*t+3}], v{T}, s[44:47], s48 offen {qpol}")
    A("v_lshlrev_b32 v78, 8, v6"); A("v_lshrrev_b32 v5, 5, v1"); A("v_lshl_add_u32 v78, v5, 6, v78")
    A("v_and_b32 v5, 3, v1"); A("v_lshl_add_u32 v78, v5, 4, v78")
    A("s_lshl_b32 s9, s3, 6"); A("v_lshlrev_b32 v79, 8, v3"); A("v_add_u32 v79, s9, v79")
    for k in range(4): A(f"v_mov_b32 v{T+4+k}, -1")
    for k in range(4): A(f"v_mov_b32 v{T+8+k}, 0")
    A(f"v_lshlrev_b32 v{T+1}, 4, v1")
    A("s_cmp_eq_u32 s3, 0"); A("s_cbranch_scc0 L_f1")
    A(f"ds_write_b128 v{T+1}, v[{T+8}:{T+11}] offset:{L_CNT}")
    A("s_lshl_b32 s9, s7, 13"); A("s_lshl_b32 s10, s4, 11"); A("s_add_u32 s9, s9, s10"); A(f"s_add_u32 s9, s9, {WS_SX}")
    A(f"buffer_store_dwordx4 v[{T+4}:{T+7}], v{T+1}, s[12:15], s9 offen sc1")
    A(f"buffer_store_dwordx4 v[{T+4}:{T+7}], v{T+1}, s[12:15], s9 offen offset:1024 sc1")
    A("s_branch L_f3")
    A("L_f1:")
    A("s_cmp_eq_u32 s3, 1"); A("s_cbranch_scc0 L_f2")
    A("s_lshl_b32 s9, s2, 10"); A(f"s_add_u32 s9, s9, {WS_ZX}")
    A(f"buffer_store_dwordx4 v[{T+4}:{T+7}], v{T+1}, s[12:15], s9 offen sc1")
    A("s_branch L_f3")
    A("L_f2:")
    A("s_cmp_eq_u32 s3, 2"); A("s_cbranch_scc0 L_f3")
    A("s_cmp_eq_u32 s8, 0"); A("s_cbranch_scc0 L_f3")
    A("s_lshl_b32 s9, s5, 12"); A(f"s_add_u32 s9, s9, {WS_YA}")
    for k in range(3): A(f"buffer_store_dwordx4 v[{T+8}:{T+11}], v{T+1}, s[12:15], s9 offen offset:{1024*k} sc1")
    A("L_f3:")
    A(f"v_and_b32 v{T}, 1, v1"); A(f"v_cmp_eq_u32 vcc, 1, v{T}")
    A(f"v_mov_b32 v{T+2}, 0xffff"); A(f"v_mov_b32 v{T+3}, 0xffff0000"); A(f"v_cndmask_b32 v{T+2}, v{T+2}, v{T+3}, vcc")
    A(f"v_lshrrev_b32 v{T}, 1, v4")
    for k in range(4):
        A(f"v_cmp_eq_u32 vcc, {k}, v{T}"); A(f"v_cndmask_b32 v{MK+k}, 0, v{T+2}, vcc")
    A(f"v_bfe_u32 v{T}, v1, 1, 3")
    for k in range(4):
        A(f"v_cmp_eq_u32 vcc, {2*k}, v{T}"); A(f"v_cndmask_b32 v{MN+k}, 0, v{T+2}, vcc")
    A("s_mov_b32 s52, 0x77777777"); A("s_mov_b32 s53, 0x77777777")
    A("s_waitcnt lgkmcnt(0)")
    A("s_barrier")

    def wave_sum(v, tmp_s, op="add"):
        A(f"v_{op}_f32_dpp v{v}, v{v}, v{v} quad_perm:[1,0,3,2] row_mask:0xf bank_mask:0xf")
        A(f"v_{op}_f32_dpp v{v}, v{v}, v{v} quad_perm:[2,3,0,1] row_mask:0xf bank_mask:0xf")
        A(f"v_{op}_f32_dpp v{v}, v{v}, v{v} row_half_mirror row_mask:0xf bank_mask:0xf")
        A(f"v_{op}_f32_dpp v{v}, v{v}, v{v} row_mirror row_mask:0xf bank_mask:0xf")
        for i in range(4): A(f"v_readlane_b32 s{tmp_s+i}, v{v}, {16*i}")
        A(f"v_mov_b32 v{v}, s{tmp_s}")
        for i in range(1, 4): A(f"v_{op}_f32 v{v}, s{tmp_s+i}, v{v}")
    def rbf(v, dst=None):
        dst = v if dst is None else dst
        A(f"v_cvt_pk_bf16_f32 v{dst}, v{v}, v{v}"); A(f"v_and_b32 v{dst}, 0xffff0000, v{dst}")
    def layernorm(S, table, ffn=False):
        s = T; d = T + 4
        A(f"v_add_f32 v{s}, v{S}, v{S+1}"); A(f"v_add_f32 v{s+1}, v{S+2}, v{S+3}")
        A(f"v_add_f32 v{s+2}, v{S+4}, v{S+5}"); A(f"v_add_f32 v{s+3}, v{S+6}, v{S+7}")
        A(f"v_add_f32 v{s}, v{s}, v{s+1}"); A(f"v_add_f32 v{s+2}, v{s+2}, v{s+3}"); A(f"v_add_f32 v{s}, v{s}, v{s+2}")
        wave_sum(s, 56)
        A(f"v_mul_f32 v{s}, {1.0/448:.10e}, v{s}")
        for i in range(8): A(f"v_sub_f32 v{d+i}, v{S+i}, v{s}")
        for i in ((4, 5, 6, 7) if ffn else (2, 3, 6, 7)): A(f"v_cndmask_b32 v{d+i}, 0, v{d+i}, s[52:53]")
        A(f"v_mul_f32 v{s+1}, v{d}, v{d}"); A(f"v_mul_f32 v{s+2}, v{d+1}, v{d+1}")
        for i in range(2, 8): A(f"v_fmac_f32 v{s+1+(i&1)}, v{d+i}, v{d+i}")
        A(f"v_add_f32 v{s+1}, v{s+1}, v{s+2}")
        rbf(s)
        wave_sum(s + 1, 56)
        for i in range(8): A(f"v_sub_f32 v{d+i}, v{S+i}, v{s}")
        A(f"v_mul_f32 v{s+1}, {1.0/448:.10e}, v{s+1}")
        rbf(s + 1)
        A(f"v_add_f32 v{s+1}, 0x3727c5ac, v{s+1}")
        rbf(s + 1)
        A(f"v_sqrt_f32 v{s+1}, v{s+1}")
        for i in range(8): rbf(d + i)
        rbf(s + 1)
        A(f"v_rcp_f32 v{s+1}, v{s+1}")
        for i in range(8): A(f"v_mul_f32 v{d+i}, v{d+i}, v{s+1}")
        if ffn:
            for i in range(4): A(f"v_cvt_pk_bf16_f32 v{d+i}, v{d+2*i}, v{d+2*i+1}")
            for u in range(2): A(f"ds_write_b64 v78, v[{d+2*u}:{d+2*u+1}] offset:{table + u*512}")
            return
        for i in range(8): A(f"v_cvt_pk_bf16_f32 v{d+i}, v{d+i}, v{d+i}")
        A(f"ds_write_b128 v78, v[{d}:{d+3}] offset:{table}")
        A(f"ds_write_b128 v78, v[{d+4}:{d+7}] offset:{table+128}")
        A("s_waitcnt lgkmcnt(0)")
        for i in range(4): A(f"ds_read_b128 v[{AV+4*i}:{AV+4*i+3}], v79 offset:{table+16*i}")
    def gemv_k(W, n):
        def ands(t):
            for k in range(4): A(f"v_and_b32 v{AS+4*(t&1)+k}, v{AV+t}, v{MK+k}")
        for k in range(4): A(f"v_mov_b32 v{DD+k}, 0")
        ands(0)
        for t in range(n):
            if t + 1 < n: ands(t + 1)
            a = AS + 4 * (t & 1)
            A(f"v_mfma_f32_16x16x32_bf16 v[{DD}:{DD+3}], v[{a}:{a+3}], v[{W+4*t}:{W+4*t+3}], v[{DD}:{DD+3}]")
    def gemv_n(W, n, val):
        def ands(t):
            for k in range(4): A(f"v_and_b32_dpp v{AS+4*(t&1)+k}, v{val}, v{MN+k} row_newbcast:{t} row_mask:0xf bank_mask:0xf")
        for k in range(4): A(f"v_mov_b32 v{DD+k}, 0")
        ands(0)
        for t in range(n):
            if t + 1 < n: ands(t + 1)
            a = AS + 4 * (t & 1)
            A(f"v_mfma_f32_16x16x32_bf16 v[{DD}:{DD+3}], v[{a}:{a+3}], v[{W+4*t}:{W+4*t+3}], v[{DD}:{DD+3}]")
    def spin_tail(lbl, sl=1):
        A(f"s_sleep {sl}"); A("s_sub_u32 s54, s54, 1"); A("s_cmp_lg_u32 s54, 0"); A(f"s_cbranch_scc1 {lbl}")

    A("s_waitcnt vmcnt(15)" if skipw < 2 else "s_waitcnt vmcnt(0)")
    for i in range(8): A(f"v_lshlrev_b32 v{X+i}, 16, v{X+i}")
    for i in (2, 3, 6, 7): A(f"v_cndmask_b32 v{X+i}, 0, v{X+i}, s[52:53]")
    layernorm(X, L_XN)
    acc_addr(5, 6)
    A("s_waitcnt vmcnt(0) lgkmcnt(0)")
    stamp(1)
    gemv_k(WQ, 14)
    A("s_mov_b32 exec_lo, 0x00ff00ff"); A("s_mov_b32 exec_hi, 0xff00ff00")
    A(f"ds_write_b128 v5, v[{DD}:{DD+3}] offset:{L_ACC}")
    A("s_mov_b64 exec, -1")
    A(f"v_add_co_u32 v{TG}, vcc, 0x7f4a7c15, v{TG}"); A(f"v_mov_b32 v{T+1}, 0x9e3779b9")
    A(f"v_addc_co_u32 v{TG+1}, vcc, v{T+1}, v{TG+1}, vcc")
    A("s_waitcnt lgkmcnt(0)")
    A("s_mov_b64 exec, 1"); A(f"v_mov_b32 v{T}, {L_CNT}"); A(f"v_mov_b32 v{T+1}, 1")
    A(f"ds_add_rtn_u32 v{T+1}, v{T}, v{T+1}")
    A("s_waitcnt lgkmcnt(0)")
    A(f"v_readfirstlane_b32 s9, v{T+1}")
    A("s_mov_b64 exec, -1")
    A("s_lshl_b32 s51, s7, 11"); A(f"s_add_u32 s51, s51, {WS_QX}")
    A(f"v_lshlrev_b32 v{T+2}, 3, v1")
    A("s_cmp_eq_u32 s9, 3"); A("s_cbranch_scc0 L_nopub")
    A(f"v_lshlrev_b32 v{T}, 2, v1")
    A("s_lshl_b32 s9, s4, 9"); A("s_add_u32 s9, s9, s51")
    acc_sum(T + 4, T)
    A(f"v_cvt_pk_bf16_f32 v{T+4}, v{T+4}, v{T+4}")
    A(f"v_mov_b32 v{T+3}, 0xffff"); A(f"v_bfi_b32 v{T+4}, v{T+3}, v{T+4}, v{TG}")
    A(f"v_mov_b32 v{T+5}, v{TG+1}")
    A(f"buffer_store_dwordx2 v[{T+4}:{T+5}], v{T+2}, s[12:15], s9 offen sc1")
    A("L_nopub:")
    A("s_cmp_eq_u32 s3, 2"); A("s_cbranch_scc0 L_noflag")
    A("s_cmp_eq_u32 s8, 0"); A("s_cbranch_scc0 L_noflag")
    srd(40, 36, None, 256)
    A("s_lshl_b32 s9, s5, 6"); A(f"v_mov_b32 v{T+6}, 1"); A("s_mov_b64 exec, 1")
    A(f"buffer_store_dword v{T+6}, v2, s[40:43], s9 offen sc1")
    A("s_mov_b64 exec, -1")
    A("L_noflag:")
    A("s_lshl_b32 s9, s3, 9"); A("s_add_u32 s9, s9, s51")
    A(f"v_lshrrev_b32 v{T+6}, 16, v{TG}")
    A(f"s_mov_b32 s54, {SPIN}")
    A("L_pollq:")
    A(f"buffer_load_dwordx2 v[{T+4}:{T+5}], v{T+2}, s[12:15], s9 offen sc1")
    A("s_waitcnt vmcnt(0)")
    A(f"v_lshrrev_b32 v{T+7}, 16, v{T+4}")
    A(f"v_cmp_eq_u32 vcc, v{T+7}, v{T+6}"); A(f"v_cmp_eq_u32 s[56:57], v{T+5}, v{TG+1}")
    A("s_and_b64 vcc, vcc, s[56:57]"); A("s_cmp_eq_u64 vcc, -1"); A("s_cbranch_scc1 L_gotq")
    spin_tail("L_pollq")
    A("L_gotq:")
    A(f"v_lshlrev_b32 v{T}, 1, v1"); A("s_lshl_b32 s9, s3, 7"); A(f"v_add_u32 v{T}, s9, v{T}")
    A(f"ds_write_b16 v{T}, v{T+4} offset:{L_Q}")
    stamp(2)
    def tr():
        if TR is not None: A(f"s_waitcnt vmcnt({TR})")
    if TR is not None:
        A("s_waitcnt lgkmcnt(0)")
        if not nob1: A("s_barrier")
    A("s_lshl_b32 s9, s6, 2"); A("s_add_u32 s9, s9, s4"); A(f"s_mul_i32 s9, s9, {64*896}")
    A(f"s_lshl_b32 s10, s3, 8"); A("s_add_u32 s9, s9, s10"); A(f"s_sub_u32 s10, {4096*896}, s9")
    srd(40, 24, "s9", "s10")
    A(f"v_lshrrev_b32 v{T+8}, 4, v1"); A(f"v_mul_u32_u24 v{T+8}, 896, v{T+8}"); A(f"v_and_b32 v{T+9}, 15, v1")
    A(f"v_lshl_add_u32 v{T+8}, v{T+9}, 4, v{T+8}")
    A("s_cmp_eq_u32 s3, 3"); A("s_cselect_b32 s60, 0x00ff00ff, -1"); A("s_mov_b32 s61, s60")
    A("s_mov_b64 exec, s[60:61]")
    for t in range(16 if not skipw else 0):
        A(f"s_mov_b32 s48, {t*3584}")
        tr()
        A(f"buffer_load_dwordx4 v[{WO+4*t}:{WO+4*t+3}], v{T+8}, s[40:43], s48 offen {opol}")
    A("s_mov_b64 exec, -1")
    if TR is None:
        A("s_waitcnt lgkmcnt(0)")
        if not nob1: A("s_barrier")
    A("s_or_b32 s9, s3, s4"); A("s_cmp_eq_u32 s9, 0"); A("s_cbranch_scc0 L_nobump")
    A("s_mov_b64 exec, 1")
    A(f"buffer_store_dwordx2 v[{TG}:{TG+1}], v2, s[12:15], s50 offen sc1")
    A("s_mov_b64 exec, -1")
    A("L_nobump:")
    srd(40, 36, None, 256)
    A(f"v_and_b32 v{T+1}, 3, v1"); A(f"v_lshlrev_b32 v{T+1}, 6, v{T+1}"); A(f"s_mov_b32 s54, {SPIN}")
    A("L_pollz:")
    A(f"buffer_load_dword v{T}, v{T+1}, s[40:43], 0 offen sc1")
    A("s_waitcnt vmcnt(0)")
    A(f"v_cmp_eq_u32 vcc, 1, v{T}")
    A("s_cmp_eq_u64 vcc, -1"); A("s_cbranch_scc1 L_gotz")
    spin_tail("L_pollz", 8)
    A("L_gotz:")
    A(f"v_mov_b32 v{T+1}, {L_CNT}"); A(f"s_mov_b32 s54, {SPIN*8}")
    A("L_pollk:")
    A(f"ds_read_b32 v{T}, v{T+1} offset:4")
    A("s_waitcnt lgkmcnt(0)")
    A(f"v_readfirstlane_b32 s10, v{T}")
    A("s_cmp_eq_u32 s10, 4"); A("s_cbranch_scc1 L_gotk")
    spin_tail("L_pollk", 2)
    A("L_gotk:")
    stamp(3)
    A("s_lshl_b32 s9, s7, 13"); A("s_lshl_b32 s10, s3, 11"); A("s_add_u32 s9, s9, s10"); A(f"s_add_u32 s9, s9, {WS_SX}")
    A(f"v_lshlrev_b32 v{T+1}, 4, v1"); A(f"s_mov_b32 s54, {SPIN}")
    SW = T + 8
    A("L_polls:")
    A(f"buffer_load_dwordx4 v[{SW}:{SW+3}], v{T+1}, s[12:15], s9 offen sc1")
    A(f"buffer_load_dwordx4 v[{SW+4}:{SW+7}], v{T+1}, s[12:15], s9 offen offset:1024 sc1")
    A("s_waitcnt vmcnt(0)")
    A(f"v_max_u32 v{T}, v{SW}, v{SW+1}")
    A(f"v_max3_u32 v{T}, v{T}, v{SW+2}, v{SW+3}"); A(f"v_max3_u32 v{T}, v{T}, v{SW+4}, v{SW+5}"); A(f"v_max3_u32 v{T}, v{T}, v{SW+6}, v{SW+7}")
    A(f"v_cmp_eq_u32 vcc, -1, v{T}")
    A("s_cmp_eq_u64 vcc, 0"); A("s_cbranch_scc1 L_gots")
    spin_tail("L_polls", 2)
    A("L_gots:")
    stamp(4)
    for i in range(8):
        A(f"v_lshlrev_b32 v{AV+i}, 16, v{SW+i}"); A(f"v_and_b32 v{AV+8+i}, 0xffff0000, v{SW+i}")
    A(f"v_max_f32 v{T}, v{AV}, v{AV+1}")
    for i in range(2, 16, 2): A(f"v_max3_f32 v{T}, v{T}, v{AV+i}, v{AV+i+1}")
    wave_sum(T, 56, "max")
    CE = 1.4426950408889634 / 16
    A(f"s_mov_b32 s55, {CE:.10e}".replace(f"{CE:.10e}", hex(f2u(CE))))
    for i in range(16): A(f"v_sub_f32 v{AV+i}, v{AV+i}, v{T}")
    for i in range(16): A(f"v_mul_f32 v{AV+i}, s55, v{AV+i}")
    for i in range(16): A(f"v_exp_f32 v{AV+i}, v{AV+i}")
    A(f"v_add_f32 v{T+1}, v{AV}, v{AV+1}"); A(f"v_add_f32 v{T+2}, v{AV+2}, v{AV+3}")
    for i in range(4, 16): A(f"v_add_f32 v{T+1+(i&1)}, v{T+1+(i&1)}, v{AV+i}")
    A(f"v_add_f32 v{T+1}, v{T+1}, v{T+2}")
    wave_sum(T + 1, 56)
    A("s_lshl_b32 s9, s3, 3"); A(f"v_mov_b32 v{T+2}, s9"); A("s_mov_b64 exec, 1")
    A(f"ds_write_b64 v{T+2}, v[{T}:{T+1}] offset:{L_CNT+16}")
    A(f"v_mov_b32 v{T+2}, {L_CNT}"); A(f"v_mov_b32 v{T+3}, 1")
    A("s_waitcnt lgkmcnt(0)")
    A(f"ds_add_u32 v{T+2}, v{T+3} offset:8")
    A("s_mov_b64 exec, -1")
    A(f"v_mov_b32 v{T+2}, {L_CNT}"); A(f"s_mov_b32 s54, {SPIN*8}")
    A("L_pollm:")
    A(f"ds_read_b32 v{T+3}, v{T+2} offset:8")
    A("s_waitcnt lgkmcnt(0)")
    A(f"v_readfirstlane_b32 s10, v{T+3}")
    A("s_cmp_eq_u32 s10, 4"); A("s_cbranch_scc1 L_gotm")
    spin_tail("L_pollm", 1)
    A("L_gotm:")
    A(f"ds_read_b128 v[{SW}:{SW+3}], v{T+2} offset:16"); A(f"ds_read_b128 v[{SW+4}:{SW+7}], v{T+2} offset:32")
    A("s_waitcnt lgkmcnt(0)")
    A(f"v_max_f32 v{T+3}, v{SW}, v{SW+2}"); A(f"v_max3_f32 v{T+3}, v{T+3}, v{SW+4}, v{SW+6}")
    for i in range(4): A(f"v_sub_f32 v{SW+2*i}, v{SW+2*i}, v{T+3}")
    A(f"v_sub_f32 v{T}, v{T}, v{T+3}")
    for i in range(4): A(f"v_mul_f32 v{SW+2*i}, s55, v{SW+2*i}")
    A(f"v_mul_f32 v{T}, s55, v{T}")
    for i in range(4): A(f"v_exp_f32 v{SW+2*i}, v{SW+2*i}")
    A(f"v_exp_f32 v{T}, v{T}")
    A(f"v_mul_f32 v{T+1}, v{SW}, v{SW+1}")
    for i in range(1, 4): A(f"v_fmac_f32 v{T+1}, v{SW+2*i}, v{SW+2*i+1}")
    A(f"v_rcp_f32 v{T+1}, v{T+1}")
    A(f"v_mul_f32 v{T}, v{T}, v{T+1}")
    A(f"v_bfe_u32 v{T+2}, v1, 4, 1"); A(f"v_lshlrev_b32 v{T+2}, 11, v{T+2}")
    A(f"v_and_b32 v{T+3}, 1, v1"); A(f"v_lshl_add_u32 v{T+2}, v{T+3}, 9, v{T+2}")
    A(f"v_bfe_u32 v{T+3}, v1, 1, 3"); A(f"v_lshl_add_u32 v{T+2}, v{T+3}, 4, v{T+2}")
    A(f"v_lshrrev_b32 v{T+3}, 5, v1"); A(f"v_lshl_add_u32 v{T+2}, v{T+3}, 2, v{T+2}")
    A("s_lshl_b32 s9, s3, 12"); A(f"v_add_u32 v{T+2}, s9, v{T+2}")
    for i in range(16): A(f"v_mul_f32 v{AV+i}, v{AV+i}, v{T}")
    for i in range(16): A(f"v_cvt_pk_bf16_f32 v{AV+i}, v{AV+i}, v{AV+i}")
    for i in range(16):
        lohi = i >> 3; u = (i >> 2) & 1; e = i & 3
        A(f"ds_write_b32 v{T+2}, v{AV+i} offset:{L_P + e*128 + lohi*1024 + u*8}")
    A("s_waitcnt lgkmcnt(0)")
    if not nob2: A("s_barrier")
    stamp(5)
    A(f"v_mov_b32 v{T+1}, {L_CNT}")
    A("s_cmp_eq_u32 s3, 0"); A("s_cbranch_scc0 L_waitrole")
    srd(40, 36, None, 256)
    A("s_mov_b64 exec, 1"); A(f"v_mov_b32 v{T}, 1")
    A(f"buffer_atomic_add v{T}, v2, s[40:43], 0 offen offset:{DBG_TICKET} sc0 sc1")
    A("s_waitcnt vmcnt(0)")
    A(f"v_add_u32 v{T}, 1, v{T}")
    A(f"ds_write_b32 v{T+1}, v{T} offset:12")
    A("s_mov_b64 exec, -1")
    A("L_waitrole:")
    A(f"s_mov_b32 s54, {SPIN*8}")
    A("L_pollr:")
    A(f"ds_read_b32 v{T}, v{T+1} offset:12")
    A("s_waitcnt lgkmcnt(0)")
    A(f"v_readfirstlane_b32 s63, v{T}")
    A("s_cmp_lg_u32 s63, 0"); A("s_cbranch_scc1 L_gotr")
    spin_tail("L_pollr", 2)
    A("L_gotr:")
    A("s_sub_u32 s63, s63, 1")
    A(f"s_cmp_lt_u32 s63, {NROLE}"); A("s_cbranch_scc0 L_norole")
    A("s_mul_i32 s9, s3, 896"); srd(40, 16, "s9", 896)
    A(f"v_bfe_u32 v{T}, v1, 2, 2"); A(f"v_lshlrev_b32 v{T}, 1, v{T}"); A(f"v_bfe_u32 v{T+1}, v1, 4, 1"); A(f"v_add_u32 v{T}, v{T}, v{T+1}")
    A(f"v_lshrrev_b32 v{T+1}, 5, v1"); A(f"v_and_b32 v{T+2}, 3, v1"); A(f"v_lshl_add_u32 v{T+1}, v{T+1}, 2, v{T+2}")
    A(f"v_lshlrev_b32 v{T+2}, 6, v{T+1}"); A(f"v_lshl_add_u32 v{T+2}, v{T}, 1, v{T+2}")
    for u in range(2):
        for e in range(4): A(f"buffer_load_ushort v{X+4*u+e}, v{T+2}, s[40:43], 0 offen offset:{u*512+e*16}")
    A(f"v_lshlrev_b32 v78, 6, v{T+1}"); A(f"v_lshl_add_u32 v78, v{T}, 3, v78"); A("s_mul_i32 s9, s3, 1040"); A("v_add_u32 v78, s9, v78")
    A("s_lshl_b32 s9, s63, 7"); A(f"s_mul_i32 s10, s3, {8*3584}"); A("s_add_u32 s9, s9, s10"); A(f"s_sub_u32 s10, {448*3584}, s9")
    srd(40, 28, "s9", "s10"); srd(44, 30, "s9", "s10")
    A(f"v_mul_u32_u24 v{T+8}, 3584, v3"); A(f"v_lshl_add_u32 v{T+8}, v4, 4, v{T+8}")
    for dst, sr in ((WQ, 40), (W3S, 44)):
        for t in range(0 if skipf else 14):
            A(f"s_mov_b32 s48, {t*32*3584}")
            A(f"buffer_load_dwordx4 v[{dst+4*t}:{dst+4*t+3}], v{T+8}, s[{sr}:{sr+3}], s48 offen {fpol}")
    A(f"v_bfe_u32 v{T}, v1, 4, 1"); A(f"v_lshl_add_u32 v{T}, v{T}, 2, v4"); A(f"v_add_u32 v{T}, s3, v{T}")
    A("s_lshl_b32 s9, s3, 11"); A(f"s_add_u32 s9, s9, {L_W}")
    A(f"v_lshlrev_b32 v{T+1}, 8, v3"); A(f"v_add_u32 v{T+1}, s9, v{T+1}")
    A(f"v_lshl_add_u32 v{T+2}, v{T}, 4, v{T+1}"); A(f"v_add_u32 v{T+3}, 0x10000, v{T+2}")
    A(f"v_xor_b32 v{T+4}, 0x80, v{T+2}"); A(f"v_xor_b32 v{T+5}, 0x80, v{T+3}")
    A(f"s_mul_i32 s9, s63, {64*896}"); A(f"s_mul_i32 s10, s3, {16*896}"); A("s_add_u32 s9, s9, s10")
    srd(40, 32, "s9", 16*896)
    A(f"v_lshlrev_b32 v{T+8}, 4, v1")
    for m, src in ((0, WQ), (1, W3S)):
        for t in range(14):
            A(f"s_waitcnt vmcnt({27-14*m-t})")
            A(f"ds_write_b128 v{T+2+2*m+(t>>3)}, v[{src+4*t}:{src+4*t+3}] offset:{(t&7)*8192}")
    A("s_waitcnt lgkmcnt(0)")
    w2reg = lambda i: (W3S + 4*i) if i < 14 else (AV + 4*(i-14))
    A("s_mov_b32 exec_hi, 0x00ffffff")
    for i in range(0 if skipf else 16):
        A(f"s_mov_b32 s48, {(i>>2)*3584}")
        A(f"buffer_load_dwordx4 v[{w2reg(i)}:{w2reg(i)+3}], v{T+8}, s[40:43], s48 offen offset:{(i&3)*896} {fpol}")
    A("s_mov_b64 exec, -1")
    A("L_norole:")
    A(f"v_and_b32 v{T+1}, 15, v1"); A(f"v_lshrrev_b32 v{T+2}, 4, v1")
    A(f"v_lshlrev_b32 v5, 4, v{T+1}"); A(f"v_lshl_add_u32 v5, v{T+2}, 2, v5")
    A("v_lshlrev_b32 v6, 2, v1")
    A("v_lshlrev_b32 v7, 7, v1")
    A(f"v_mov_b32 v{T+2}, 1")
    A("s_lshl_b32 s50, s5, 12"); A(f"s_add_u32 s50, s50, {WS_YA}")
    A("s_lshl_b32 s9, s3, 9"); A("s_add_u32 s51, s50, s9")
    A("s_waitcnt vmcnt(0)")
    A("s_barrier")
    stamp(6)
    acc_sum(T + 4, 5)
    A(f"v_cvt_pk_bf16_f32 v{T}, v{T+4}, v{T+4}")
    gemv_n(WO, 16, T)
    A("s_mov_b64 exec, s[60:61]")
    A(f"buffer_atomic_add_f32 v{DD}, v6, s[12:15], s51 offen sc1")
    A(f"buffer_atomic_add_f32 v{DD+1}, v6, s[12:15], s51 offen offset:256 sc1")
    A(f"s_mov_b64 exec, {(1<<R)-1}")
    A("s_waitcnt vmcnt(0)")
    A(f"buffer_atomic_add v{T+2}, v7, s[12:15], s50 offen offset:2048 sc1")
    A("s_mov_b64 exec, -1")
    A(f"s_cmp_lt_u32 s63, {NROLE}"); A("s_cbranch_scc0 L_done")
    tr_w13()
    for i in range(8): A(f"v_lshlrev_b32 v{X+i}, 16, v{X+i}")
    A(f"s_mul_i32 s9, s3, {16*928}"); A(f"s_add_u32 s9, s9, {L_W}")
    A(f"v_lshlrev_b32 v{T}, 4, v1"); A(f"v_add_u32 v{T}, s9, v{T}")
    A("s_waitcnt lgkmcnt(0)")
    A("s_barrier")
    A("s_mov_b32 exec_hi, 0x00ffffff")
    for i in range(16): A(f"ds_write_b128 v{T}, v[{w2reg(i)}:{w2reg(i)+3}] offset:{i*928}")
    A("s_mov_b64 exec, -1")
    A("L_ffn:")
    H = T + 16
    A_HN, A_ACTW, A_ACTR, A_ST, A_L16, A_H, A_OUT, A_W2 = range(AD, AD + 8)
    A(f"v_lshrrev_b32 v{T+2}, 4, v1"); A(f"v_bfe_u32 v{T+3}, v1, 2, 2"); A(f"v_and_b32 v{T+4}, 3, v1")
    A(f"v_mul_u32_u24 v{A_HN}, 1040, v{T+4}"); A(f"v_lshl_add_u32 v{A_HN}, v{T+3}, 6, v{A_HN}"); A(f"v_lshl_add_u32 v{A_HN}, v{T+2}, 4, v{A_HN}")
    A(f"v_mul_u32_u24 v{A_ACTW}, 144, v{T+4}"); A(f"v_lshl_add_u32 v{A_ACTR}, v{T+2}, 4, v{A_ACTW}")
    A(f"v_and_b32 v{T+5}, 1, v{T+2}"); A(f"v_lshl_add_u32 v{A_ACTW}, v{T+5}, 3, v{A_ACTW}")
    A(f"v_lshrrev_b32 v{T+5}, 5, v1"); A(f"v_lshl_add_u32 v{A_ACTW}, v{T+5}, 2, v{A_ACTW}")
    A("s_lshl_b32 s9, s62, 4"); A(f"v_add_u32 v{A_ACTW}, s9, v{A_ACTW}")
    A(f"v_lshlrev_b32 v{A_ST}, 12, v3"); A(f"v_lshl_add_u32 v{A_ST}, v4, 4, v{A_ST}")
    A(f"v_lshlrev_b32 v{A_L16}, 4, v1")
    A("s_lshl_b32 s68, s62, 15"); A("s_lshl_b32 s9, s63, 7"); A("s_add_u32 s68, s68, s9"); A(f"s_add_u32 s68, s68, {WS_ZX}")
    A(f"v_lshl_add_u32 v{A_W2}, v{T+2}, 3, v{T+3}"); A(f"v_mul_u32_u24 v{A_W2}, 928, v{A_W2}"); A(f"v_lshl_add_u32 v{A_W2}, v{T+4}, 3, v{A_W2}")
    A("s_min_u32 s9, s62, 6"); A("s_lshl_b32 s9, s9, 7"); A(f"s_add_u32 s9, s9, {L_W}"); A(f"v_add_u32 v{A_W2}, s9, v{A_W2}")
    A("s_lshl_b32 s9, s63, 1"); A("s_and_b32 s10, s62, 1"); A("s_add_u32 s9, s9, s10")
    A("s_lshl_b32 s69, s9, 12"); A(f"s_add_u32 s69, s69, {WS_ZX}")
    A("s_lshr_b32 s64, s9, 3"); A("s_lshl_b32 s64, s64, 6"); A("s_lshl_b32 s10, s10, 5"); A("s_add_u32 s64, s64, s10")
    A("s_bfe_u32 s10, s9, 0x20001"); A("s_lshl_b32 s10, s10, 2"); A("s_add_u32 s64, s64, s10")
    A(f"v_and_b32 v{T+5}, 4, v1"); A(f"v_lshlrev_b32 v{T+5}, 2, v{T+5}"); A(f"v_add_u32 v{T+5}, s64, v{T+5}")
    A(f"v_mul_u32_u24 v{A_OUT}, 896, v{T+4}"); A(f"v_lshl_add_u32 v{A_OUT}, v{T+5}, 1, v{A_OUT}")
    A(f"v_lshrrev_b32 v{A_H}, 7, v{T+5}"); A(f"v_lshlrev_b32 v{A_H}, 9, v{A_H}"); A(f"v_lshl_add_u32 v{A_H}, v{T+4}, 11, v{A_H}")
    A(f"v_bfe_u32 v{T+6}, v{T+5}, 3, 4"); A(f"v_lshl_add_u32 v{A_H}, v{T+6}, 2, v{A_H}")
    A(f"v_and_b32 v{T+6}, 4, v{T+5}"); A(f"v_lshl_add_u32 v{A_H}, v{T+6}, 5, v{A_H}")
    srd(44, 34, None, 3584)
    for q in range(1, 4):
        A(f"s_mov_b32 s{70+2*q}, {0x000f000f << (4*q):#x}"); A(f"s_mov_b32 s{71+2*q}, {0x000f000f << (4*q):#x}")
    A("s_waitcnt lgkmcnt(0)")
    A("s_barrier")
    for q in range(4):
        for sk in range(2):
            for h in range(2):
                r = W2F + 8*q + 4*sk + 2*h
                A(f"ds_read_b64_tr_b16 v[{r}:{r+1}], v{A_W2} offset:{(32*sk+4*h)*928 + 32*q}")
    for k in range(16): A(f"v_mov_b32 v{DQ+k}, 0")
    A("s_cmp_lt_u32 s62, 4"); A("s_cbranch_scc1 L_f1wait")
    A("s_mov_b32 s52, -1"); A("s_mov_b32 s53, 0x33333333")
    A("s_lshl_b32 s50, s3, 12"); A(f"s_add_u32 s50, s50, {WS_YA}")
    A(f"s_and_b32 s9, s63, {R-1}"); A("s_lshl_b32 s9, s9, 7"); A("s_add_u32 s9, s9, s50"); A(f"s_mov_b32 s54, {SPIN}")
    A("s_lshl_b32 s10, s3, 11"); A(f"v_add_u32 v79, s10, v{A_L16}")
    if fst: stamp(5)
    A("L_polly:")
    A(f"buffer_load_dword v{T}, v2, s[12:15], s9 offen offset:2048 sc1")
    A("s_waitcnt vmcnt(0)")
    A(f"v_readfirstlane_b32 s10, v{T}")
    A("s_cmp_eq_u32 s10, 256"); A("s_cbranch_scc1 L_goty")
    spin_tail("L_polly", 1)
    A("L_goty:")
    A(f"buffer_load_dwordx4 v[{H}:{H+3}], v{A_L16}, s[12:15], s50 offen sc1")
    A(f"buffer_load_dwordx4 v[{H+4}:{H+7}], v{A_L16}, s[12:15], s50 offen offset:1024 sc1")
    A("s_waitcnt vmcnt(0)")
    stamp(7)
    for i in range(8): rbf(H + i)
    for i in range(8): A(f"v_add_f32 v{H+i}, v{H+i}, v{X+i}")
    for i in range(8): rbf(H + i)
    A(f"ds_write_b128 v79, v[{H}:{H+3}] offset:{L_H}")
    A(f"ds_write_b128 v79, v[{H+4}:{H+7}] offset:{L_H+1024}")
    layernorm(H, L_HN, True)
    A("L_f1wait:")
    A("s_waitcnt lgkmcnt(0)")
    if fst: stamp(2)
    A("s_barrier")
    if fst: stamp(3)
    for i in range(4): A(f"ds_read_b128 v[{AV+4*i}:{AV+4*i+3}], v{A_HN} offset:{L_HN+256*i}")
    for r in range(4): A(f"ds_read_b32 v{H+r}, v{A_H} offset:{L_H+64*(r>>1)+256*(r&1)}")
    for t in range(14):
        if t % 4 == 0: A(f"s_waitcnt lgkmcnt({7-t//4})")
        d = DQ + 4*(t&3); b = AV + 4*(t>>2)
        A(f"v_mfma_f32_16x16x32_bf16 v[{d}:{d+3}], v[{WQ+4*t}:{WQ+4*t+3}], v[{b}:{b+3}], v[{d}:{d+3}]")
    for r in range(4): A(f"v_add_f32_dpp v{DQ+8+r}, v{DQ+12+r}, v{DQ+8+r} row_shl:4 row_mask:0xf bank_mask:0xf")
    for r in range(4): A(f"v_add_f32_dpp v{DQ+r}, v{DQ+4+r}, v{DQ+r} row_shl:4 row_mask:0xf bank_mask:0xf")
    for r in range(4): A(f"v_add_f32_dpp v{T+r}, v{DQ+8+r}, v{DQ+r} row_shl:8 row_mask:0xf bank_mask:0xf")
    for r in range(4): rbf(T + r)
    A(f"v_permlane32_swap_b32 v{T}, v{T+2}"); A(f"v_permlane32_swap_b32 v{T+1}, v{T+3}")
    for i in range(2): A(f"v_mul_f32 v{T+4+i}, {hex(f2u(-1.4426950408889634))}, v{T+i}")
    for i in range(2): A(f"v_exp_f32 v{T+4+i}, v{T+4+i}")
    for i in range(2): A(f"v_add_f32 v{T+4+i}, 1.0, v{T+4+i}")
    for i in range(2): A(f"v_rcp_f32 v{T+4+i}, v{T+4+i}")
    for i in range(2): A(f"v_mul_f32 v{T+4+i}, v{T+4+i}, v{T+i}")
    for i in range(2): rbf(T + 4 + i)
    for i in range(2): A(f"v_mul_f32 v{T+4+i}, v{T+4+i}, v{T+2+i}")
    A(f"v_cvt_pk_bf16_f32 v{T}, v{T+4}, v{T+5}")
    A("s_mov_b32 exec_lo, 0x000f000f"); A("s_mov_b32 exec_hi, 0x000f000f")
    A(f"ds_write_b32 v{A_ACTW}, v{T} offset:{L_ACT}")
    A("s_mov_b64 exec, -1")
    RD = 64
    for k in range(4): A(f"v_mov_b32 v{RD+12+k}, 0")
    A(f"s_mov_b32 s54, {SPIN}")
    A("s_waitcnt lgkmcnt(0)")
    A("s_barrier")
    if fst: stamp(4)
    A("s_cmp_eq_u32 s62, 7"); A("s_cbranch_scc1 L_pollo")
    for sk in range(2): A(f"ds_read_b128 v[{AV+4*sk}:{AV+4*sk+3}], v{A_ACTR} offset:{L_ACT+64*sk}")
    for sk in range(2):
        A(f"s_waitcnt lgkmcnt({1-sk})")
        for q in range(4):
            d = DQ + 4*q; a = W2F + 8*q + 4*sk; c = f"v[{d}:{d+3}]" if sk else "0"
            A(f"v_mfma_f32_16x16x32_bf16 v[{d}:{d+3}], v[{a}:{a+3}], v[{AV+4*sk}:{AV+4*sk+3}], {c}")
    for q in range(1, 4):
        for r in range(4): A(f"v_cndmask_b32 v{DQ+r}, v{DQ+r}, v{DQ+4*q+r}, s[{70+2*q}:{71+2*q}]")
    for k in range(4): A(f"v_min_u32 v{DQ+k}, -2, v{DQ+k}")
    A(f"buffer_store_dwordx4 v[{DQ}:{DQ+3}], v{A_ST}, s[12:15], s68 offen sc1")
    if fst: stamp(0)
    A("s_cmp_eq_u32 s62, 6"); A("s_cbranch_scc0 L_done")
    A("L_pollo:")
    for i in range(3): A(f"buffer_load_dwordx4 v[{RD+4*i}:{RD+4*i+3}], v{A_L16}, s[12:15], s69 offen offset:{1024*i} sc1")
    A("s_mov_b32 exec_hi, 0")
    A(f"buffer_load_dwordx4 v[{RD+12}:{RD+15}], v{A_L16}, s[12:15], s69 offen offset:3072 sc1")
    A("s_mov_b32 exec_hi, -1")
    A("s_waitcnt vmcnt(0)")
    A(f"v_max_u32 v{T}, v{RD}, v{RD+1}")
    for i in range(2, 16, 2): A(f"v_max3_u32 v{T}, v{T}, v{RD+i}, v{RD+i+1}")
    A(f"v_cmp_eq_u32 vcc, -1, v{T}")
    A("s_cmp_eq_u64 vcc, 0"); A("s_cbranch_scc1 L_goto")
    spin_tail("L_pollo", 1)
    A("L_goto:")
    for k in range(8): A(f"v_add_f32 v{RD+k}, v{RD+k}, v{RD+8+k}")
    for k in range(4): A(f"v_add_f32 v{RD+k}, v{RD+k}, v{RD+4+k}")
    for k in range(4): A(f"v_add_f32_dpp v{RD+k}, v{RD+k}, v{RD+k} row_ror:8 row_mask:0xf bank_mask:0xf")
    for k in range(4): A(f"v_mov_b32 v{RD+4+k}, v{RD+k}")
    for k in range(4): A(f"v_permlane16_swap_b32 v{RD+k}, v{RD+4+k}")
    for k in range(4): A(f"v_add_f32 v{RD+k}, v{RD+k}, v{RD+4+k}")
    for k in range(4): A(f"v_mov_b32 v{RD+4+k}, v{RD+k}")
    for k in range(4): A(f"v_permlane32_swap_b32 v{RD+k}, v{RD+4+k}")
    for k in range(4): A(f"v_add_f32 v{RD+k}, v{RD+k}, v{RD+4+k}")
    for k in range(4): rbf(RD + k)
    for k in range(4): A(f"v_add_f32 v{RD+k}, v{RD+k}, v{H+k}")
    A(f"v_cvt_pk_bf16_f32 v{T+2}, v{RD}, v{RD+1}"); A(f"v_cvt_pk_bf16_f32 v{T+3}, v{RD+2}, v{RD+3}")
    A("s_mov_b64 exec, 0xff")
    A(f"buffer_store_dwordx2 v[{T+2}:{T+3}], v{A_OUT}, s[44:47], 0 offen")
    A("s_mov_b64 exec, -1")
    A("L_done:")
    if stamps:
        A("s_waitcnt vmcnt(0)")
        A("s_mov_b32 s3, s62")
        A("s_cmp_lt_u32 s62, 4"); A("s_cbranch_scc1 L_st1")
        A("s_memrealtime s[86:87]")
        A("L_st1:")
    write_stamps(True)
    A("s_endpgm")

    body = A.finish()
    out = HDR + f"; @launch grid=(256,1,1) block=(512,1,1) lds={LDS_SIZE}\n"
    out += f'.amdgcn_target "amdgcn-amd-amdhsa--gfx950"\n.text\n.globl {NAME}\n.p2align 8\n.type {NAME},@function\n'
    out += body
    out += f'''.section .rodata,"a"
.p2align 6
.amdhsa_kernel {NAME}
  .amdhsa_next_free_vgpr 256
  .amdhsa_next_free_sgpr 102
  .amdhsa_accum_offset 256
  .amdhsa_group_segment_fixed_size 0
  .amdhsa_kernarg_size 96
  .amdhsa_user_sgpr_count 2
  .amdhsa_user_sgpr_kernarg_segment_ptr 1
  .amdhsa_system_sgpr_workgroup_id_x 1
.end_amdhsa_kernel
'''
    return out

import struct
def f2u(f): return struct.unpack("<I", struct.pack("<f", f))[0]

if __name__ == "__main__":
    kw = eval("dict(" + (sys.argv[2] if len(sys.argv) > 2 else "") + ")")
    open(sys.argv[1], "w").write(gen(**kw))
```

```python
import sys, os
sys.path.insert(0, os.path.dirname(os.path.abspath(__file__)))
from asmlib import Asm

NAME = "sequential_preLN__mha_block_cached__glu_gated_swiglu__decode_kernel"
HDR = open(os.path.join(os.path.dirname(os.path.abspath(__file__)), "header.txt")).read()

WS_EP, WS_QX, WS_SX, WS_YA, WS_ZX, WS_TS = 0x0, 0x180000, 0x40000, 0x100000, 0x200000, 0x300000
WS_SIZE = 0x400000
L_P, L_Q, L_CNT, L_XN, L_ACC, L_H, L_HN, L_ACT, L_W = 0x0, 0x4000, 0x4200, 0x4800, 0x5000, 0x5800, 0x7800, 0x9000, 0xa000
LDS_SIZE = L_W + 448 * 256
NROLE = 28
DBG_TICKET = 16
SPIN = 200000

def gen(NG=13, D=8, stamps=False, wpol="", perload=True, dbg=False, skipw=0, nob1=False, nob2=False, TR=None, D0=None, R=4, fst=False, skipf=False, fpol='', opol='', qpol='', skipy=0, swap=0, touch=0, early=False, rot=0, qsl=1, ssl=2, qpre=False, nofill=0, spol='sc1', kpol='nt', vpol='nt'):
    if dbg: stamps = True
    A = Asm()
    nstamp = [0]; svc_mode = [False]
    def stamp(i, e=False):
        if early and not e and i in (1, 2, 3, 4, 5, 6, 7) and not (svc_mode[0] and i == 2): return
        if e and not early: return
        if stamps:
            A(f"s_memrealtime s[{84+2*i}:{85+2*i}]")
    def srd(d, base, off, size):
        if off is None:
            A(f"s_mov_b32 s{d}, s{base}"); A(f"s_mov_b32 s{d+1}, s{base+1}")
        else:
            A(f"s_add_u32 s{d}, s{base}, {off}"); A(f"s_addc_u32 s{d+1}, s{base+1}, 0")
        A(f"s_mov_b32 s{d+2}, {size}"); A(f"s_mov_b32 s{d+3}, 0x20000")
    def write_stamps(svc=False):
        if not stamps: return
        if dbg:
            if not svc: return
            A("s_cmp_eq_u32 s3, 4"); A("s_cbranch_scc0 L_exit")
            A("s_waitcnt lgkmcnt(0)")
            A("s_mov_b64 exec, 1")
            srd(40, 36, None, 256)
            A("v_mov_b32 v2, 0")
            A("s_not_b32 s84, s84")
            for i in range(8): A(f"v_mov_b32 v{8+i}, s{84+2*i}")
            for i in range(8):
                if not svc and i > 5: continue
                A(f"buffer_atomic_umax v{8+i}, v2, s[40:43], 0 offen offset:{(8+i)*4 if svc else (1+i)*4} sc1")
            A("s_waitcnt vmcnt(0)")
            return
        A("s_waitcnt lgkmcnt(0)")
        A("s_mov_b64 exec, 1")
        A("s_lshl_b32 s60, s2, 3"); A("s_add_u32 s60, s60, s3"); A("s_lshl_b32 s60, s60, 6"); A(f"s_add_u32 s60, s60, {WS_TS}")
        A("v_mov_b32 v2, 0")
        for i in range(8):
            A(f"v_mov_b32 v{8+i}, s{84+2*i}")
        A("s_getreg_b32 s61, hwreg(HW_REG_XCC_ID)")
        A("v_mov_b32 v16, s61")
        A("buffer_store_dwordx4 v[8:11], v2, s[12:15], s60 offen")
        A("buffer_store_dwordx4 v[12:15], v2, s[12:15], s60 offen offset:16")
        A("buffer_store_dword v16, v2, s[12:15], s60 offen offset:32")
        A("s_waitcnt vmcnt(0)")

    A(f"{NAME}:")
    A("s_cmp_ge_u32 s2, 256")
    A("s_cbranch_scc1 L_exit")
    if stamps:
        for i in range(8): A(f"s_mov_b32 s{84+2*i}, 0")
    stamp(0)
    A("s_load_dwordx16 s[16:31], s[0:1], 0")
    A("s_load_dwordx8 s[32:39], s[0:1], 64")
    A("v_lshrrev_b32 v2, 6, v0")
    A("v_and_b32 v1, 63, v0")
    A("v_lshlrev_b32 v10, 2, v1"); A("v_mov_b32 v16, 0")
    A("v_readfirstlane_b32 s3, v2")
    A(f"ds_write_b32 v10, v16 offset:{L_CNT}")
    if swap == 1:
        A("s_bfe_u32 s4, s2, 0x20001"); A("s_and_b32 s9, s2, 1")
    elif swap == 3:
        A("s_bfe_u32 s10, s2, 0x10002"); A("s_mul_i32 s10, s10, 3"); A("s_and_b32 s4, s2, 1"); A("s_xor_b32 s4, s4, s10"); A("s_bfe_u32 s9, s2, 0x10001")
    else:
        A("s_and_b32 s4, s2, 1"); A("s_lshr_b32 s9, s2, 1"); A("s_and_b32 s10, s9, 2"); A("s_or_b32 s4, s4, s10"); A("s_and_b32 s9, s9, 1")
    A("s_lshr_b32 s10, s2, 5"); A("s_lshl1_add_u32 s6, s10, s9")
    A("s_bfe_u32 s5, s2, 0x20003"); A("s_lshl4_add_u32 s7, s5, s6")
    A("v_lshrrev_b32 v3, 3, v1"); A("v_and_b32 v4, 7, v1")
    A("s_lshl2_add_u32 s10, s7, s4"); A("s_lshl_b32 s10, s10, 19")
    A("v_lshlrev_b32 v6, 9, v3"); A("v_lshl_add_u32 v6, v4, 4, v6")
    A("v_lshl_add_u32 v5, v2, 12, v6")
    A(f"s_mov_b32 s42, {512<<10}"); A("s_mov_b32 s43, 0x20000")
    A("s_cmp_ge_u32 s3, 4")
    A("s_waitcnt lgkmcnt(0)")
    stamp(1, True)
    A("s_barrier")
    A("s_cbranch_scc1 L_service")

    RING = 256 - NG * 16
    Q = RING - 16
    assert Q >= 24
    A("s_add_u32 s40, s18, s10"); A("s_addc_u32 s41, s19, 0")
    def common():
        A("s_andn2_b32 s8, s2, 24")
        A("s_mov_b32 s62, s3")
        srd(12, 38, None, WS_SIZE)
    def acc_addr(v, t):
        A(f"v_bfe_u32 v{t}, v1, 4, 1"); A(f"v_lshlrev_b32 v{t}, 4, v{t}"); A(f"v_lshl_add_u32 v{t}, v4, 5, v{t}")
        A(f"v_lshrrev_b32 v{v}, 5, v1"); A(f"v_lshl_add_u32 v{v}, v{v}, 8, v{t}")
        A("s_lshl_b32 s9, s3, 9"); A(f"v_add_u32 v{v}, s9, v{v}")
    def acc_sum(dst, addr):
        for i in range(4): A(f"ds_read2st64_b32 v[{dst+2*i}:{dst+2*i+1}], v{addr} offset0:{L_ACC//256+2*i} offset1:{L_ACC//256+2*i+1}")
        A("s_waitcnt lgkmcnt(0)")
        for i in range(4): A(f"v_add_f32 v{dst+i}, v{dst+i}, v{dst+4+i}")
        A(f"v_add_f32 v{dst}, v{dst}, v{dst+1}"); A(f"v_add_f32 v{dst+2}, v{dst+2}, v{dst+3}"); A(f"v_add_f32 v{dst}, v{dst}, v{dst+2}")
    ops = []
    def wait_for(tag):
        idx = max(i for i, t in enumerate(ops) if t == tag)
        n = len(ops) - 1 - idx
        A(f"s_waitcnt vmcnt({min(n,63)})")
    landed = set()
    def throttle(n):
        if len(ops) > n:
            A(f"s_waitcnt vmcnt({n})")
            for t in ops[:len(ops) - n]: landed.add(t)
            for t in ops[len(ops) - n:]: landed.discard(t)
    def issue(e):
        r = RING + (e % NG) * 16
        if rot and (e < 32 or rot & 64):
            if e == 0: A(f"s_mul_i32 s59, s2, {rot & 63}"); A("s_lshr_b32 s48, s2, 3"); A("s_add_u32 s59, s59, s48")
            A(f"s_add_u32 s48, s59, {e}"); A("s_and_b32 s48, s48, 31"); A(f"s_lshl_b32 s48, s48, {14 if e < 32 else 16}")
        elif e < 32: A(f"s_mov_b32 s48, {e*16384}")
        else: A(f"s_mov_b32 s48, {(e-32)*65536}")
        if not perload: throttle(D - 4)
        for j in range(4):
            if perload: throttle((D0 if (D0 and e < NG) else D) - 1)
            if e < 32: A(f"buffer_load_dwordx4 v[{r+4*j}:{r+4*j+3}], v5, s[40:43], s48 offen offset:{128*j} {kpol}")
            else: A(f"buffer_load_dwordx4 v[{r+4*j}:{r+4*j+3}], v{6+j}, s[44:47], s48 offen {vpol}")
            ops.append(e)
    def consume_k(c):
        if c not in landed: wait_for(c)
        r = RING + (c % NG) * 16
        for j in range(4): A(f"v_mov_b32 v{12+j}, 0")
        for k in range(4):
            for j in range(4): A(f"v_dot2c_f32_bf16 v{12+j}, v{r+4*j+k}, v{Q+4*j+k}")
        A("v_add_f32 v12, v12, v13"); A("v_add_f32 v14, v14, v15"); A("v_add_f32 v12, v12, v14")
        A("v_add_f32_dpp v12, v12, v12 quad_perm:[1,0,3,2] row_mask:0xf bank_mask:0xf")
        A("v_add_f32_dpp v12, v12, v12 quad_perm:[2,3,0,1] row_mask:0xf bank_mask:0xf")
        A("v_add_f32_dpp v12, v12, v12 row_half_mirror row_mask:0xf bank_mask:0xf")
        dst = 16 + ((c >> 3) & 1)
        A(f"v_cndmask_b32 v{dst}, v{dst}, v12, s[{64+2*(c&7)}:{65+2*(c&7)}]")
        if c % 16 == 15:
            A("v_cvt_pk_bf16_f32 v18, v16, v17")
            A("v_min_u32 v18, -2, v18")
            A(f"buffer_store_dword v18, v10, s[12:15], s49 offen offset:{256*(c>>4)} sc1")
            ops.append("st")
    PM, PA, PP, ACC = Q, Q + 4, 12, Q + 12
    def read_p(c):
        A(f"ds_read_b128 v[{PP+4*(c&1)}:{PP+4*(c&1)+3}], v11 offset:{L_P + c*512}")
    def consume_v(c):
        e = 32 + c
        A("s_waitcnt lgkmcnt(0)")
        if c + 1 < 32: read_p(c + 1)
        if e not in landed: wait_for(e)
        r = RING + (e % NG) * 16
        p = PP + 4 * (c & 1)
        def ands(j):
            for k in range(4): A(f"v_and_b32 v{PA+4*(j&1)+k}, v{p+j}, v{PM+k}")
        def mf(j):
            a = PA + 4 * (j & 1)
            A(f"v_mfma_f32_16x16x32_bf16 v[{ACC}:{ACC+3}], v[{a}:{a+3}], v[{r+4*j}:{r+4*j+3}], v[{ACC}:{ACC+3}]")
        ands(0); ands(1); mf(0); ands(2); mf(1); ands(3); mf(2); mf(3)

    first = ((D0 or D) + 3) // 4
    for e in range(first): issue(e)
    stamp(2, True)
    common()
    A("s_lshl_b32 s9, s7, 21")
    A("s_lshl_b32 s10, s4, 7"); A(f"s_sub_u32 s11, {2<<20}, s10"); A("s_add_u32 s10, s10, s9")
    srd(44, 20, "s10", "s11")
    A("v_lshl_add_u32 v6, v2, 14, v6")
    for j in range(1, 4): A(f"v_add_u32 v{6+j}, {4096*j}, v6")
    A("s_lshl_b32 s49, s7, 13"); A("s_lshl_b32 s9, s4, 11"); A("s_add_u32 s49, s49, s9")
    A("s_lshl_b32 s9, s3, 9"); A("s_add_u32 s49, s49, s9"); A(f"s_add_u32 s49, s49, {WS_SX}")
    A("v_lshlrev_b32 v11, 4, v3"); A("s_lshl_b32 s9, s3, 7"); A("v_add_u32 v11, s9, v11")
    for c in range(8):
        A(f"s_mov_b32 s{64+2*c}, {0x01010101 << c:#x}"); A(f"s_mov_b32 s{65+2*c}, {0x01010101 << c:#x}")
    A("v_mov_b32 v17, 0")
    stamp(3, True)
    kc = 0; vc = 0
    for e in range(first, 64):
        if e == 3: stamp(4, True)
        if e == 4: stamp(5, True)
        if e == 6: stamp(6, True)
        if e == 10: stamp(7, True)
        if e - NG >= 0 and e - NG < 32 and kc <= e - NG:
            if kc == 0:
                stamp(6)
                if not nob1: A("s_barrier")
                stamp(1)
                A("v_lshlrev_b32 v19, 4, v4")
                for j in range(4): A(f"ds_read_b128 v[{Q+4*j}:{Q+4*j+3}], v19 offset:{L_Q+128*j}")
                A("s_waitcnt lgkmcnt(0)")
            consume_k(kc); kc += 1
        if e >= 32:
            while kc < 32 and kc in landed:
                consume_k(kc); kc += 1
                if kc == 32:
                    stamp(2)
                    A("s_mov_b64 exec, 1"); A(f"v_mov_b32 v19, {L_CNT+4}"); A("v_mov_b32 v18, 1")
                    A("ds_add_u32 v19, v18"); A("s_mov_b64 exec, -1")
                    A("v_and_b32 v19, 1, v1"); A("v_cmp_eq_u32 vcc, 1, v19")
                    A("v_mov_b32 v18, 0xffff"); A("v_mov_b32 v19, 0xffff0000"); A("v_cndmask_b32 v18, v18, v19, vcc")
                    A("v_lshrrev_b32 v19, 1, v4")
                    for k in range(4):
                        A(f"v_cmp_eq_u32 vcc, {k}, v19"); A(f"v_cndmask_b32 v{PM+k}, 0, v18, vcc")
                    for k in range(4): A(f"v_mov_b32 v{ACC+k}, 0")
                    acc_addr(10, 18)
        if e - NG >= 32:
            assert kc == 32
            if vc == 0:
                stamp(7)
                if not nob2: A("s_barrier")
                stamp(3)
                read_p(0)
            consume_v(vc); vc += 1
        issue(e)
    while vc < 32:
        consume_v(vc); vc += 1
    stamp(4)
    A("s_mov_b32 exec_lo, 0x00ff00ff"); A("s_mov_b32 exec_hi, 0xff00ff00")
    A(f"ds_write_b128 v10, v[{ACC}:{ACC+3}] offset:{L_ACC}")
    A("s_waitcnt lgkmcnt(0)")
    A("s_mov_b64 exec, -1")
    A("s_barrier")
    stamp(5)
    A(f"v_mov_b32 v19, {L_CNT}")
    A("ds_read_b32 v18, v19 offset:12")
    A("s_waitcnt lgkmcnt(0)")
    A("v_readfirstlane_b32 s63, v18")
    A("s_sub_u32 s63, s63, 1")
    A(f"s_cmp_lt_u32 s63, {NROLE}"); A("s_cbranch_scc1 L_sffn")
    write_stamps()
    A("L_exit:")
    A("s_endpgm")
    A("L_sffn:")
    X = 8
    T = 16
    AV = 40
    MK = 56
    MN = 60
    AS = 64
    DD = 72
    TG = 76
    WQ = 80
    WO = 136
    W3S = 200
    W2F, DQ, AD = 136, 168, 184
    def tr_w13():
        a = T + 12
        A(f"v_lshrrev_b32 v{a+2}, 4, v1"); A(f"v_bfe_u32 v{a+3}, v1, 2, 2")
        A(f"v_lshlrev_b32 v{a}, 9, v{a+2}"); A(f"v_lshl_add_u32 v{a}, v{a+3}, 11, v{a}")
        A(f"v_and_b32 v{a+2}, 1, v{a+2}"); A(f"v_lshl_add_u32 v{a+3}, v{a+2}, 2, v{a+3}")
        A(f"v_and_b32 v{a+2}, 2, v1"); A(f"v_lshl_add_u32 v{a+3}, v{a+2}, 2, v{a+3}")
        A(f"v_add_u32 v{a+3}, s62, v{a+3}"); A(f"v_and_b32 v{a+3}, 15, v{a+3}")
        A(f"v_lshl_add_u32 v{a}, v{a+3}, 4, v{a}")
        A(f"v_and_b32 v{a+2}, 1, v1"); A(f"v_lshl_add_u32 v{a}, v{a+2}, 3, v{a}")
        A(f"v_add_u32 v{a}, {L_W}, v{a}"); A(f"v_add_u32 v{a+1}, 0x10000, v{a}")
        for t in range(14):
            for h in range(2):
                A(f"ds_read_b64_tr_b16 v[{WQ+4*t+2*h}:{WQ+4*t+2*h+1}], v{a+(t>>3)} offset:{(t&7)*8192+h*256}")
    tr_w13()
    A("s_waitcnt lgkmcnt(0)")
    A("s_barrier")
    A("s_branch L_ffn")

    A("L_service:")
    svc_mode[0] = True
    common()
    A("s_sub_u32 s3, s3, 4")
    A("s_mul_i32 s9, s3, 896"); srd(40, 16, "s9", 896)
    A("v_lshrrev_b32 v5, 5, v1"); A("v_mul_u32_u24 v5, 14, v5"); A("v_and_b32 v6, 3, v1"); A("v_lshl_add_u32 v5, v6, 2, v5")
    A("v_bfe_u32 v6, v1, 2, 2"); A("v_lshlrev_b32 v6, 1, v6"); A("v_bfe_u32 v7, v1, 4, 1"); A("v_add_u32 v6, v6, v7")
    A("v_lshl_add_u32 v7, v5, 3, v6"); A("v_lshlrev_b32 v7, 1, v7")
    for u in range(2):
        for e in range(4): A(f"buffer_load_ushort v{X+4*u+e}, v7, s[40:43], 0 offen offset:{u*448+e*16}")
    A("v_mov_b32 v2, 0"); A("s_lshl_b32 s50, s6, 7")
    A(f"buffer_load_dword v{TG}, v2, s[12:15], s50 offen sc1")
    A("s_lshl_b32 s9, s6, 9"); A("s_lshl_b32 s10, s4, 7"); A("s_add_u32 s9, s9, s10")
    A(f"s_mul_i32 s10, s5, {112*8192}"); A("s_add_u32 s9, s9, s10")
    srd(44, 22, "s9", 111*8192 + 128)
    A(f"v_lshlrev_b32 v{T}, 13, v3"); A(f"v_lshl_add_u32 v{T}, v4, 4, v{T}")
    A("s_lshl_b32 s9, s3, 16"); A(f"v_add_u32 v{T}, s9, v{T}")
    for t in range(4):
        if t: A(f"v_add_u32 v{T}, {4*65536}, v{T}")
        A(f"buffer_load_dwordx4 v[{WQ+4*t}:{WQ+4*t+3}], v{T}, s[44:47], 0 offen {qpol}")
    stamp(3, True)
    A("v_lshlrev_b32 v78, 8, v6"); A("v_lshrrev_b32 v5, 5, v1"); A("v_lshl_add_u32 v78, v5, 6, v78")
    A("v_and_b32 v5, 3, v1"); A("v_lshl_add_u32 v78, v5, 4, v78")
    A("s_lshl_b32 s10, s3, 11"); A("v_add_u32 v78, s10, v78")
    A("s_lshl_b32 s9, s5, 6"); A("s_add_u32 s9, s9, s10"); A("v_lshlrev_b32 v79, 8, v3"); A("v_add_u32 v79, s9, v79")
    for k in range(4): A(f"v_mov_b32 v{T+4+k}, -1")
    for k in range(4): A(f"v_mov_b32 v{T+8+k}, 0")
    A(f"v_lshlrev_b32 v{T+1}, 4, v1")
    A("s_cmp_eq_u32 s3, 0"); A("s_cbranch_scc0 L_f1")
    A("s_lshl_b32 s9, s7, 13"); A("s_lshl_b32 s10, s4, 11"); A("s_add_u32 s9, s9, s10"); A(f"s_add_u32 s9, s9, {WS_SX}")
    if not nofill & 1:
        A(f"buffer_store_dwordx4 v[{T+4}:{T+7}], v{T+1}, s[12:15], s9 offen {spol}")
        A(f"buffer_store_dwordx4 v[{T+4}:{T+7}], v{T+1}, s[12:15], s9 offen offset:1024 {spol}")
    A("s_branch L_f3")
    A("L_f1:")
    A("s_cmp_eq_u32 s3, 1"); A("s_cbranch_scc0 L_f2")
    A("s_lshl_b32 s9, s2, 10"); A(f"s_add_u32 s9, s9, {WS_ZX}")
    if not nofill & 2: A(f"buffer_store_dwordx4 v[{T+4}:{T+7}], v{T+1}, s[12:15], s9 offen {spol}")
    A("s_branch L_f3")
    A("L_f2:")
    A("s_cmp_eq_u32 s3, 2"); A("s_cbranch_scc0 L_f3")
    A("s_cmp_eq_u32 s8, 0"); A("s_cbranch_scc0 L_f3")
    A("s_lshl_b32 s9, s5, 12"); A(f"s_add_u32 s9, s9, {WS_YA}")
    for k in range(3): A(f"buffer_store_dwordx4 v[{T+8}:{T+11}], v{T+1}, s[12:15], s9 offen offset:{1024*k} sc1")
    A("L_f3:")
    A(f"v_and_b32 v{T}, 1, v1"); A(f"v_cmp_eq_u32 vcc, 1, v{T}")
    A(f"v_mov_b32 v{T+2}, 0xffff"); A(f"v_mov_b32 v{T+3}, 0xffff0000"); A(f"v_cndmask_b32 v{T+2}, v{T+2}, v{T+3}, vcc")
    A(f"v_lshrrev_b32 v{T}, 1, v4")
    for k in range(4):
        A(f"v_cmp_eq_u32 vcc, {k}, v{T}"); A(f"v_cndmask_b32 v{MK+k}, 0, v{T+2}, vcc")
    A(f"v_bfe_u32 v{T}, v1, 1, 3")
    for k in range(4):
        A(f"v_cmp_eq_u32 vcc, {2*k}, v{T}"); A(f"v_cndmask_b32 v{MN+k}, 0, v{T+2}, vcc")
    A("s_mov_b32 s52, 0x77777777"); A("s_mov_b32 s53, 0x77777777")

    def wave_sum(v, tmp_s, op="add"):
        A(f"v_{op}_f32_dpp v{v}, v{v}, v{v} quad_perm:[1,0,3,2] row_mask:0xf bank_mask:0xf")
        A(f"v_{op}_f32_dpp v{v}, v{v}, v{v} quad_perm:[2,3,0,1] row_mask:0xf bank_mask:0xf")
        A(f"v_{op}_f32_dpp v{v}, v{v}, v{v} row_half_mirror row_mask:0xf bank_mask:0xf")
        A(f"v_{op}_f32_dpp v{v}, v{v}, v{v} row_mirror row_mask:0xf bank_mask:0xf")
        for i in range(4): A(f"v_readlane_b32 s{tmp_s+i}, v{v}, {16*i}")
        A(f"v_mov_b32 v{v}, s{tmp_s}")
        for i in range(1, 4): A(f"v_{op}_f32 v{v}, s{tmp_s+i}, v{v}")
    def rbf(v, dst=None):
        dst = v if dst is None else dst
        A(f"v_cvt_pk_bf16_f32 v{dst}, v{v}, v{v}"); A(f"v_and_b32 v{dst}, 0xffff0000, v{dst}")
    def layernorm(S, table, ffn=False):
        s = T; d = T + 4
        A(f"v_add_f32 v{s}, v{S}, v{S+1}"); A(f"v_add_f32 v{s+1}, v{S+2}, v{S+3}")
        A(f"v_add_f32 v{s+2}, v{S+4}, v{S+5}"); A(f"v_add_f32 v{s+3}, v{S+6}, v{S+7}")
        A(f"v_add_f32 v{s}, v{s}, v{s+1}"); A(f"v_add_f32 v{s+2}, v{s+2}, v{s+3}"); A(f"v_add_f32 v{s}, v{s}, v{s+2}")
        wave_sum(s, 56)
        A(f"v_mul_f32 v{s}, {1.0/448:.10e}, v{s}")
        for i in range(8): A(f"v_sub_f32 v{d+i}, v{S+i}, v{s}")
        for i in ((4, 5, 6, 7) if ffn else (2, 3, 6, 7)): A(f"v_cndmask_b32 v{d+i}, 0, v{d+i}, s[52:53]")
        A(f"v_mul_f32 v{s+1}, v{d}, v{d}"); A(f"v_mul_f32 v{s+2}, v{d+1}, v{d+1}")
        for i in range(2, 8): A(f"v_fmac_f32 v{s+1+(i&1)}, v{d+i}, v{d+i}")
        A(f"v_add_f32 v{s+1}, v{s+1}, v{s+2}")
        rbf(s)
        wave_sum(s + 1, 56)
        for i in range(8): A(f"v_sub_f32 v{d+i}, v{S+i}, v{s}")
        A(f"v_mul_f32 v{s+1}, {1.0/448:.10e}, v{s+1}")
        rbf(s + 1)
        A(f"v_add_f32 v{s+1}, 0x3727c5ac, v{s+1}")
        rbf(s + 1)
        A(f"v_sqrt_f32 v{s+1}, v{s+1}")
        for i in range(8): rbf(d + i)
        rbf(s + 1)
        A(f"v_rcp_f32 v{s+1}, v{s+1}")
        for i in range(8): A(f"v_mul_f32 v{d+i}, v{d+i}, v{s+1}")
        if ffn:
            for i in range(4): A(f"v_cvt_pk_bf16_f32 v{d+i}, v{d+2*i}, v{d+2*i+1}")
            for u in range(2): A(f"ds_write_b64 v78, v[{d+2*u}:{d+2*u+1}] offset:{table + u*512}")
            return
        for i in range(8): A(f"v_cvt_pk_bf16_f32 v{d+i}, v{d+i}, v{d+i}")
        A(f"ds_write_b128 v78, v[{d}:{d+3}] offset:{table}")
        A(f"ds_write_b128 v78, v[{d+4}:{d+7}] offset:{table+128}")
        A("s_waitcnt lgkmcnt(0)")
        for i in range(4): A(f"ds_read_b128 v[{AV+4*i}:{AV+4*i+3}], v79 offset:{table+16*i}")
    def gemv_k(W, n, lg=False):
        def ands(t):
            for k in range(4): A(f"v_and_b32 v{AS+4*(t&1)+k}, v{AV+t}, v{MK+k}")
        for k in range(4): A(f"v_mov_b32 v{DD+k}, 0")
        ands(0)
        for t in range(n):
            if t + 1 < n: ands(t + 1)
            a = AS + 4 * (t & 1)
            if lg: A(f"s_waitcnt lgkmcnt({n-1-t})")
            A(f"v_mfma_f32_16x16x32_bf16 v[{DD}:{DD+3}], v[{a}:{a+3}], v[{W+4*t}:{W+4*t+3}], v[{DD}:{DD+3}]")
    def gemv_n(W, n, val):
        def ands(t):
            for k in range(4): A(f"v_and_b32_dpp v{AS+4*(t&1)+k}, v{val}, v{MN+k} row_newbcast:{t} row_mask:0xf bank_mask:0xf")
        for k in range(4): A(f"v_mov_b32 v{DD+k}, 0")
        ands(0)
        for t in range(n):
            if t + 1 < n: ands(t + 1)
            a = AS + 4 * (t & 1)
            A(f"v_mfma_f32_16x16x32_bf16 v[{DD}:{DD+3}], v[{a}:{a+3}], v[{W+4*t}:{W+4*t+3}], v[{DD}:{DD+3}]")
    def spin_tail(lbl, sl=1):
        A(f"s_sleep {sl}"); A("s_sub_u32 s54, s54, 1"); A("s_cmp_lg_u32 s54, 0"); A(f"s_cbranch_scc1 {lbl}")

    A("s_waitcnt vmcnt(5)")
    stamp(4, True)
    for i in range(8): A(f"v_lshlrev_b32 v{X+i}, 16, v{X+i}")
    for i in (2, 3, 6, 7): A(f"v_cndmask_b32 v{X+i}, 0, v{X+i}, s[52:53]")
    layernorm(X, L_P)
    acc_addr(5, 6)
    A(f"v_lshlrev_b32 v{T+1}, 4, v1"); A("s_lshl_b32 s9, s3, 10"); A(f"v_add_u32 v{T+2}, s9, v{T+1}")
    A(f"v_mov_b32 v{T+3}, {L_CNT}"); A(f"v_mov_b32 v{T+4}, 1"); A(f"s_mov_b32 s54, {SPIN*8}")
    A("s_waitcnt vmcnt(0)")
    stamp(5, True)
    for t in range(4): A(f"ds_write_b128 v{T+2}, v[{WQ+4*t}:{WQ+4*t+3}] offset:{L_W+4096*t}")
    A("s_waitcnt lgkmcnt(0)")
    A("s_mov_b64 exec, 1")
    A(f"ds_add_u32 v{T+3}, v{T+4}")
    A("s_mov_b64 exec, -1")
    A("L_pollw:")
    A(f"ds_read_b32 v{T}, v{T+3}")
    A("s_waitcnt lgkmcnt(0)")
    A(f"v_readfirstlane_b32 s10, v{T}")
    A("s_cmp_eq_u32 s10, 4"); A("s_cbranch_scc1 L_gotw")
    spin_tail("L_pollw", 1)
    A("L_gotw:")
    stamp(1)
    for t in range(14): A(f"ds_read_b128 v[{WQ+4*t}:{WQ+4*t+3}], v{T+1} offset:{L_W+1024*t}")
    A(f"v_add_u32 v{TG}, 0x9e3779b9, v{TG}")
    A(f"v_lshlrev_b32 v{T+2}, 3, v1")
    A("s_lshl_b32 s9, s6, 15"); A(f"s_add_u32 s9, s9, {WS_QX}")
    A("s_lshl_b32 s51, s5, 13"); A("s_add_u32 s51, s51, s9"); A("s_lshl_b32 s10, s3, 11"); A("s_add_u32 s51, s51, s10")
    A("s_lshl_b32 s10, s3, 13"); A("s_add_u32 s9, s9, s10"); A("s_lshl_b32 s10, s4, 11"); A("s_add_u32 s9, s9, s10")
    A("s_lshl_b32 s10, s5, 9"); A("s_add_u32 s9, s9, s10")
    A(f"v_lshlrev_b32 v{T}, 2, v1"); A("s_lshl_b32 s10, s3, 9"); A(f"v_add_u32 v{T}, s10, v{T}")
    gemv_k(WQ, 14, True)
    A("s_mov_b32 exec_lo, 0x00ff00ff"); A("s_mov_b32 exec_hi, 0xff00ff00")
    A(f"ds_write_b128 v5, v[{DD}:{DD+3}] offset:{L_ACC}")
    A("s_mov_b64 exec, -1")
    A(f"ds_read2st64_b32 v[{T+4}:{T+5}], v{T} offset0:{L_ACC//256} offset1:{L_ACC//256+1}")
    A("s_waitcnt lgkmcnt(0)")
    A(f"v_add_f32 v{T+4}, v{T+4}, v{T+5}")
    A(f"v_mov_b32 v{T+5}, v{TG}")
    if not nofill & 4: A(f"buffer_store_dwordx2 v[{T+4}:{T+5}], v{T+2}, s[12:15], s9 offen {spol}")
    stamp(6, True)
    A("s_cmp_eq_u32 s3, 2"); A("s_cbranch_scc0 L_noflag")
    A("s_cmp_eq_u32 s8, 0"); A("s_cbranch_scc0 L_noflag")
    srd(40, 36, None, 256)
    A("s_lshl_b32 s9, s5, 6"); A(f"v_mov_b32 v{T+6}, 1"); A("s_mov_b64 exec, 1")
    A(f"buffer_store_dword v{T+6}, v2, s[40:43], s9 offen sc1")
    A("s_mov_b64 exec, -1")
    A("L_noflag:")
    A(f"s_mov_b32 s54, {SPIN if not nofill & 4 else 1}")
    if qpre:
        A(f"v_lshlrev_b32 v{T+3}, 9, v1"); A("s_mov_b64 exec, 15")
        A("L_pollq0:")
        A(f"buffer_load_dword v{T+5}, v{T+3}, s[12:15], s51 offen offset:508 sc1")
        A("s_waitcnt vmcnt(0)")
        A(f"v_cmp_eq_u32 vcc, v{T+5}, v{TG}")
        A("s_cmp_eq_u64 vcc, 15"); A("s_cbranch_scc1 L_gotq0")
        spin_tail("L_pollq0", qsl)
        A("L_gotq0:")
        A("s_mov_b64 exec, -1"); A(f"s_mov_b32 s54, {SPIN}")
    A("L_pollq:")
    for k in range(4): A(f"buffer_load_dwordx2 v[{T+4+2*k}:{T+5+2*k}], v{T+2}, s[12:15], s51 offen offset:{512*k} sc1")
    A("s_waitcnt vmcnt(0)")
    for k in range(4): A(f"v_xor_b32 v{T+5+2*k}, v{T+5+2*k}, v{TG}")
    A(f"v_or_b32 v{T+5}, v{T+5}, v{T+7}"); A(f"v_or3_b32 v{T+5}, v{T+5}, v{T+9}, v{T+11}")
    A(f"v_cmp_eq_u32 vcc, 0, v{T+5}")
    A("s_cmp_eq_u64 vcc, -1"); A("s_cbranch_scc1 L_gotq")
    spin_tail("L_pollq", qsl)
    A("L_gotq:")
    A(f"v_add_f32 v{T+4}, v{T+4}, v{T+6}"); A(f"v_add_f32 v{T+8}, v{T+8}, v{T+10}"); A(f"v_add_f32 v{T+4}, v{T+4}, v{T+8}")
    A(f"v_cvt_pk_bf16_f32 v{T+4}, v{T+4}, v{T+4}")
    A(f"v_lshlrev_b32 v{T}, 1, v1"); A("s_lshl_b32 s9, s3, 7"); A(f"v_add_u32 v{T}, s9, v{T}")
    A(f"ds_write_b16 v{T}, v{T+4} offset:{L_Q}")
    stamp(2)
    if touch:
        A("s_lshl_b32 s9, s7, 21"); A("s_lshl_b32 s10, s4, 7"); A("s_add_u32 s10, s10, s9"); A("s_lshl_b32 s11, s3, 19"); A("s_add_u32 s10, s10, s11")
        srd(40, 20, "s10", (512 << 10) - 384)
        A(f"v_mul_u32_u24 v{T+12}, {touch*1024}, v1")
        A(f"buffer_load_dword v{T+13}, v{T+12}, s[40:43], 0 offen nt")
        A("s_lshl_b32 s10, s4, 19"); A("s_add_u32 s10, s10, s9"); A("s_lshl_b32 s11, s3, 17"); A("s_add_u32 s10, s10, s11")
        srd(40, 18, "s10", 128 << 10)
        A(f"buffer_load_dword v{T+14}, v{T+12}, s[40:43], 0 offen nt")
    def tr():
        if TR is not None: A(f"s_waitcnt vmcnt({TR})")
    if TR is not None:
        A("s_waitcnt lgkmcnt(0)")
        if not nob1: A("s_barrier")
    A("s_lshl_b32 s9, s6, 2"); A("s_add_u32 s9, s9, s4"); A(f"s_mul_i32 s9, s9, {64*896}")
    A(f"s_lshl_b32 s10, s3, 8"); A("s_add_u32 s9, s9, s10"); A(f"s_sub_u32 s10, {4096*896}, s9")
    srd(40, 24, "s9", "s10")
    A(f"v_lshrrev_b32 v{T+8}, 4, v1"); A(f"v_mul_u32_u24 v{T+8}, 896, v{T+8}"); A(f"v_and_b32 v{T+9}, 15, v1")
    A(f"v_lshl_add_u32 v{T+8}, v{T+9}, 4, v{T+8}")
    A("s_cmp_eq_u32 s3, 3"); A("s_cselect_b32 s60, 0x00ff00ff, -1"); A("s_mov_b32 s61, s60")
    A("s_mov_b64 exec, s[60:61]")
    for t in range(16 if not skipw else 0):
        A(f"s_mov_b32 s48, {t*3584}")
        tr()
        A(f"buffer_load_dwordx4 v[{WO+4*t}:{WO+4*t+3}], v{T+8}, s[40:43], s48 offen {opol}")
    A("s_mov_b64 exec, -1")
    if TR is None:
        A("s_waitcnt lgkmcnt(0)")
        if not nob1: A("s_barrier")
    stamp(7, True)
    A("s_or_b32 s9, s3, s4"); A("s_or_b32 s9, s9, s5"); A("s_cmp_eq_u32 s9, 0"); A("s_cbranch_scc0 L_nobump")
    A("s_mov_b64 exec, 1")
    A(f"buffer_store_dword v{TG}, v2, s[12:15], s50 offen sc1")
    A("s_mov_b64 exec, -1")
    A("L_nobump:")
    srd(40, 36, None, 256)
    A(f"v_and_b32 v{T+1}, 3, v1"); A(f"v_lshlrev_b32 v{T+1}, 6, v{T+1}"); A(f"s_mov_b32 s54, {SPIN}")
    A("L_pollz:")
    A(f"buffer_load_dword v{T}, v{T+1}, s[40:43], 0 offen sc1")
    A("s_waitcnt vmcnt(0)")
    A(f"v_cmp_eq_u32 vcc, 1, v{T}")
    A("s_cmp_eq_u64 vcc, -1"); A("s_cbranch_scc1 L_gotz")
    spin_tail("L_pollz", 8)
    A("L_gotz:")
    A(f"v_mov_b32 v{T+1}, {L_CNT}"); A(f"s_mov_b32 s54, {SPIN*8}")
    A("L_pollk:")
    A(f"ds_read_b32 v{T}, v{T+1} offset:4")
    A("s_waitcnt lgkmcnt(0)")
    A(f"v_readfirstlane_b32 s10, v{T}")
    A("s_cmp_eq_u32 s10, 4"); A("s_cbranch_scc1 L_gotk")
    spin_tail("L_pollk", 2)
    A("L_gotk:")
    stamp(3)
    A("s_lshl_b32 s9, s7, 13"); A("s_lshl_b32 s10, s3, 11"); A("s_add_u32 s9, s9, s10"); A(f"s_add_u32 s9, s9, {WS_SX}")
    A(f"v_lshlrev_b32 v{T+1}, 4, v1"); A(f"s_mov_b32 s54, {SPIN}")
    SW = T + 8
    A("L_polls:")
    A(f"buffer_load_dwordx4 v[{SW}:{SW+3}], v{T+1}, s[12:15], s9 offen sc1")
    A(f"buffer_load_dwordx4 v[{SW+4}:{SW+7}], v{T+1}, s[12:15], s9 offen offset:1024 sc1")
    A("s_waitcnt vmcnt(0)")
    A(f"v_max_u32 v{T}, v{SW}, v{SW+1}")
    A(f"v_max3_u32 v{T}, v{T}, v{SW+2}, v{SW+3}"); A(f"v_max3_u32 v{T}, v{T}, v{SW+4}, v{SW+5}"); A(f"v_max3_u32 v{T}, v{T}, v{SW+6}, v{SW+7}")
    A(f"v_cmp_eq_u32 vcc, -1, v{T}")
    A("s_cmp_eq_u64 vcc, 0"); A("s_cbranch_scc1 L_gots")
    spin_tail("L_polls", ssl)
    A("L_gots:")
    stamp(4)
    for i in range(8):
        A(f"v_lshlrev_b32 v{AV+i}, 16, v{SW+i}"); A(f"v_and_b32 v{AV+8+i}, 0xffff0000, v{SW+i}")
    A(f"v_max_f32 v{T}, v{AV}, v{AV+1}")
    for i in range(2, 16, 2): A(f"v_max3_f32 v{T}, v{T}, v{AV+i}, v{AV+i+1}")
    wave_sum(T, 56, "max")
    CE = 1.4426950408889634 / 16
    A(f"s_mov_b32 s55, {CE:.10e}".replace(f"{CE:.10e}", hex(f2u(CE))))
    for i in range(16): A(f"v_sub_f32 v{AV+i}, v{AV+i}, v{T}")
    for i in range(16): A(f"v_mul_f32 v{AV+i}, s55, v{AV+i}")
    for i in range(16): A(f"v_exp_f32 v{AV+i}, v{AV+i}")
    A(f"v_add_f32 v{T+1}, v{AV}, v{AV+1}"); A(f"v_add_f32 v{T+2}, v{AV+2}, v{AV+3}")
    for i in range(4, 16): A(f"v_add_f32 v{T+1+(i&1)}, v{T+1+(i&1)}, v{AV+i}")
    A(f"v_add_f32 v{T+1}, v{T+1}, v{T+2}")
    wave_sum(T + 1, 56)
    A("s_lshl_b32 s9, s3, 3"); A(f"v_mov_b32 v{T+2}, s9"); A("s_mov_b64 exec, 1")
    A(f"ds_write_b64 v{T+2}, v[{T}:{T+1}] offset:{L_CNT+16}")
    A(f"v_mov_b32 v{T+2}, {L_CNT}"); A(f"v_mov_b32 v{T+3}, 1")
    A("s_waitcnt lgkmcnt(0)")
    A(f"ds_add_u32 v{T+2}, v{T+3} offset:8")
    A("s_mov_b64 exec, -1")
    A(f"v_mov_b32 v{T+2}, {L_CNT}"); A(f"s_mov_b32 s54, {SPIN*8}")
    A("L_pollm:")
    A(f"ds_read_b32 v{T+3}, v{T+2} offset:8")
    A("s_waitcnt lgkmcnt(0)")
    A(f"v_readfirstlane_b32 s10, v{T+3}")
    A("s_cmp_eq_u32 s10, 4"); A("s_cbranch_scc1 L_gotm")
    spin_tail("L_pollm", 1)
    A("L_gotm:")
    A(f"ds_read_b128 v[{SW}:{SW+3}], v{T+2} offset:16"); A(f"ds_read_b128 v[{SW+4}:{SW+7}], v{T+2} offset:32")
    A("s_waitcnt lgkmcnt(0)")
    A(f"v_max_f32 v{T+3}, v{SW}, v{SW+2}"); A(f"v_max3_f32 v{T+3}, v{T+3}, v{SW+4}, v{SW+6}")
    for i in range(4): A(f"v_sub_f32 v{SW+2*i}, v{SW+2*i}, v{T+3}")
    A(f"v_sub_f32 v{T}, v{T}, v{T+3}")
    for i in range(4): A(f"v_mul_f32 v{SW+2*i}, s55, v{SW+2*i}")
    A(f"v_mul_f32 v{T}, s55, v{T}")
    for i in range(4): A(f"v_exp_f32 v{SW+2*i}, v{SW+2*i}")
    A(f"v_exp_f32 v{T}, v{T}")
    A(f"v_mul_f32 v{T+1}, v{SW}, v{SW+1}")
    for i in range(1, 4): A(f"v_fmac_f32 v{T+1}, v{SW+2*i}, v{SW+2*i+1}")
    A(f"v_rcp_f32 v{T+1}, v{T+1}")
    A(f"v_mul_f32 v{T}, v{T}, v{T+1}")
    A(f"v_bfe_u32 v{T+2}, v1, 4, 1"); A(f"v_lshlrev_b32 v{T+2}, 11, v{T+2}")
    A(f"v_and_b32 v{T+3}, 1, v1"); A(f"v_lshl_add_u32 v{T+2}, v{T+3}, 9, v{T+2}")
    A(f"v_bfe_u32 v{T+3}, v1, 1, 3"); A(f"v_lshl_add_u32 v{T+2}, v{T+3}, 4, v{T+2}")
    A(f"v_lshrrev_b32 v{T+3}, 5, v1"); A(f"v_lshl_add_u32 v{T+2}, v{T+3}, 2, v{T+2}")
    A("s_lshl_b32 s9, s3, 12"); A(f"v_add_u32 v{T+2}, s9, v{T+2}")
    for i in range(16): A(f"v_mul_f32 v{AV+i}, v{AV+i}, v{T}")
    for i in range(16): A(f"v_cvt_pk_bf16_f32 v{AV+i}, v{AV+i}, v{AV+i}")
    for i in range(16):
        lohi = i >> 3; u = (i >> 2) & 1; e = i & 3
        A(f"ds_write_b32 v{T+2}, v{AV+i} offset:{L_P + e*128 + lohi*1024 + u*8}")
    A("s_waitcnt lgkmcnt(0)")
    if not nob2: A("s_barrier")
    stamp(5)
    A(f"v_mov_b32 v{T+1}, {L_CNT}")
    A("s_cmp_eq_u32 s3, 0"); A("s_cbranch_scc0 L_waitrole")
    srd(40, 36, None, 256)
    A("s_mov_b64 exec, 1"); A(f"v_mov_b32 v{T}, 1")
    A(f"buffer_atomic_add v{T}, v2, s[40:43], 0 offen offset:{DBG_TICKET} sc0 sc1")
    A("s_waitcnt vmcnt(0)")
    A(f"v_add_u32 v{T}, 1, v{T}")
    A(f"ds_write_b32 v{T+1}, v{T} offset:12")
    A("s_mov_b64 exec, -1")
    A("L_waitrole:")
    A(f"s_mov_b32 s54, {SPIN*8}")
    A("L_pollr:")
    A(f"ds_read_b32 v{T}, v{T+1} offset:12")
    A("s_waitcnt lgkmcnt(0)")
    A(f"v_readfirstlane_b32 s63, v{T}")
    A("s_cmp_lg_u32 s63, 0"); A("s_cbranch_scc1 L_gotr")
    spin_tail("L_pollr", 2)
    A("L_gotr:")
    A("s_sub_u32 s63, s63, 1")
    A(f"s_cmp_lt_u32 s63, {NROLE}"); A("s_cbranch_scc0 L_norole")
    A("s_mul_i32 s9, s3, 896"); srd(40, 16, "s9", 896)
    A(f"v_bfe_u32 v{T}, v1, 2, 2"); A(f"v_lshlrev_b32 v{T}, 1, v{T}"); A(f"v_bfe_u32 v{T+1}, v1, 4, 1"); A(f"v_add_u32 v{T}, v{T}, v{T+1}")
    A(f"v_lshrrev_b32 v{T+1}, 5, v1"); A(f"v_and_b32 v{T+2}, 3, v1"); A(f"v_lshl_add_u32 v{T+1}, v{T+1}, 2, v{T+2}")
    A(f"v_lshlrev_b32 v{T+2}, 6, v{T+1}"); A(f"v_lshl_add_u32 v{T+2}, v{T}, 1, v{T+2}")
    for u in range(2):
        for e in range(4): A(f"buffer_load_ushort v{X+4*u+e}, v{T+2}, s[40:43], 0 offen offset:{u*512+e*16}")
    A(f"v_lshlrev_b32 v78, 6, v{T+1}"); A(f"v_lshl_add_u32 v78, v{T}, 3, v78"); A("s_mul_i32 s9, s3, 1040"); A("v_add_u32 v78, s9, v78")
    A("s_lshl_b32 s9, s63, 7"); A(f"s_mul_i32 s10, s3, {8*3584}"); A("s_add_u32 s9, s9, s10"); A(f"s_sub_u32 s10, {448*3584}, s9")
    srd(40, 28, "s9", "s10"); srd(44, 30, "s9", "s10")
    A(f"v_mul_u32_u24 v{T+8}, 3584, v3"); A(f"v_lshl_add_u32 v{T+8}, v4, 4, v{T+8}")
    for dst, sr in ((WQ, 40), (W3S, 44)):
        for t in range(0 if skipf else 14):
            A(f"s_mov_b32 s48, {t*32*3584}")
            A(f"buffer_load_dwordx4 v[{dst+4*t}:{dst+4*t+3}], v{T+8}, s[{sr}:{sr+3}], s48 offen {fpol}")
    A(f"v_bfe_u32 v{T}, v1, 4, 1"); A(f"v_lshl_add_u32 v{T}, v{T}, 2, v4"); A(f"v_add_u32 v{T}, s3, v{T}")
    A("s_lshl_b32 s9, s3, 11"); A(f"s_add_u32 s9, s9, {L_W}")
    A(f"v_lshlrev_b32 v{T+1}, 8, v3"); A(f"v_add_u32 v{T+1}, s9, v{T+1}")
    A(f"v_lshl_add_u32 v{T+2}, v{T}, 4, v{T+1}"); A(f"v_add_u32 v{T+3}, 0x10000, v{T+2}")
    A(f"v_xor_b32 v{T+4}, 0x80, v{T+2}"); A(f"v_xor_b32 v{T+5}, 0x80, v{T+3}")
    A(f"s_mul_i32 s9, s63, {64*896}"); A(f"s_mul_i32 s10, s3, {16*896}"); A("s_add_u32 s9, s9, s10")
    srd(40, 32, "s9", 16*896)
    A(f"v_lshlrev_b32 v{T+8}, 4, v1")
    for m, src in ((0, WQ), (1, W3S)):
        for t in range(14):
            A(f"s_waitcnt vmcnt({27-14*m-t})")
            A(f"ds_write_b128 v{T+2+2*m+(t>>3)}, v[{src+4*t}:{src+4*t+3}] offset:{(t&7)*8192}")
    A("s_waitcnt lgkmcnt(0)")
    w2reg = lambda i: (W3S + 4*i) if i < 14 else (AV + 4*(i-14))
    A("s_mov_b32 exec_hi, 0x00ffffff")
    for i in range(0 if skipf else 16):
        A(f"s_mov_b32 s48, {(i>>2)*3584}")
        A(f"buffer_load_dwordx4 v[{w2reg(i)}:{w2reg(i)+3}], v{T+8}, s[40:43], s48 offen offset:{(i&3)*896} {fpol}")
    A("s_mov_b64 exec, -1")
    A("L_norole:")
    A(f"v_and_b32 v{T+1}, 15, v1"); A(f"v_lshrrev_b32 v{T+2}, 4, v1")
    A(f"v_lshlrev_b32 v5, 4, v{T+1}"); A(f"v_lshl_add_u32 v5, v{T+2}, 2, v5")
    A("v_lshlrev_b32 v6, 2, v1")
    A("v_lshlrev_b32 v7, 7, v1")
    A(f"v_mov_b32 v{T+2}, 1")
    A("s_lshl_b32 s50, s5, 12"); A(f"s_add_u32 s50, s50, {WS_YA}")
    A("s_lshl_b32 s9, s3, 9"); A("s_add_u32 s51, s50, s9")
    A("s_waitcnt vmcnt(0)")
    A("s_barrier")
    stamp(6)
    acc_sum(T + 4, 5)
    A(f"v_cvt_pk_bf16_f32 v{T}, v{T+4}, v{T+4}")
    gemv_n(WO, 16, T)
    A("s_mov_b64 exec, s[60:61]")
    if not skipy & 1:
        A(f"buffer_atomic_add_f32 v{DD}, v6, s[12:15], s51 offen sc1")
        A(f"buffer_atomic_add_f32 v{DD+1}, v6, s[12:15], s51 offen offset:256 sc1")
    A(f"s_mov_b64 exec, {(1<<R)-1}")
    A("s_waitcnt vmcnt(0)")
    if not skipy & 2: A(f"buffer_atomic_add v{T+2}, v7, s[12:15], s50 offen offset:2048 sc1")
    A("s_mov_b64 exec, -1")
    A(f"s_cmp_lt_u32 s63, {NROLE}"); A("s_cbranch_scc0 L_done")
    tr_w13()
    for i in range(8): A(f"v_lshlrev_b32 v{X+i}, 16, v{X+i}")
    A(f"s_mul_i32 s9, s3, {16*928}"); A(f"s_add_u32 s9, s9, {L_W}")
    A(f"v_lshlrev_b32 v{T}, 4, v1"); A(f"v_add_u32 v{T}, s9, v{T}")
    A("s_waitcnt lgkmcnt(0)")
    A("s_barrier")
    A("s_mov_b32 exec_hi, 0x00ffffff")
    for i in range(16): A(f"ds_write_b128 v{T}, v[{w2reg(i)}:{w2reg(i)+3}] offset:{i*928}")
    A("s_mov_b64 exec, -1")
    A("L_ffn:")
    H = T + 16
    A_HN, A_ACTW, A_ACTR, A_ST, A_L16, A_H, A_OUT, A_W2 = range(AD, AD + 8)
    A(f"v_lshrrev_b32 v{T+2}, 4, v1"); A(f"v_bfe_u32 v{T+3}, v1, 2, 2"); A(f"v_and_b32 v{T+4}, 3, v1")
    A(f"v_mul_u32_u24 v{A_HN}, 1040, v{T+4}"); A(f"v_lshl_add_u32 v{A_HN}, v{T+3}, 6, v{A_HN}"); A(f"v_lshl_add_u32 v{A_HN}, v{T+2}, 4, v{A_HN}")
    A(f"v_mul_u32_u24 v{A_ACTW}, 144, v{T+4}"); A(f"v_lshl_add_u32 v{A_ACTR}, v{T+2}, 4, v{A_ACTW}")
    A(f"v_and_b32 v{T+5}, 1, v{T+2}"); A(f"v_lshl_add_u32 v{A_ACTW}, v{T+5}, 3, v{A_ACTW}")
    A(f"v_lshrrev_b32 v{T+5}, 5, v1"); A(f"v_lshl_add_u32 v{A_ACTW}, v{T+5}, 2, v{A_ACTW}")
    A("s_lshl_b32 s9, s62, 4"); A(f"v_add_u32 v{A_ACTW}, s9, v{A_ACTW}")
    A(f"v_lshlrev_b32 v{A_ST}, 12, v3"); A(f"v_lshl_add_u32 v{A_ST}, v4, 4, v{A_ST}")
    A(f"v_lshlrev_b32 v{A_L16}, 4, v1")
    A("s_lshl_b32 s68, s62, 15"); A("s_lshl_b32 s9, s63, 7"); A("s_add_u32 s68, s68, s9"); A(f"s_add_u32 s68, s68, {WS_ZX}")
    A(f"v_lshl_add_u32 v{A_W2}, v{T+2}, 3, v{T+3}"); A(f"v_mul_u32_u24 v{A_W2}, 928, v{A_W2}"); A(f"v_lshl_add_u32 v{A_W2}, v{T+4}, 3, v{A_W2}")
    A("s_min_u32 s9, s62, 6"); A("s_lshl_b32 s9, s9, 7"); A(f"s_add_u32 s9, s9, {L_W}"); A(f"v_add_u32 v{A_W2}, s9, v{A_W2}")
    A("s_lshl_b32 s9, s63, 1"); A("s_and_b32 s10, s62, 1"); A("s_add_u32 s9, s9, s10")
    A("s_lshl_b32 s69, s9, 12"); A(f"s_add_u32 s69, s69, {WS_ZX}")
    A("s_lshr_b32 s64, s9, 3"); A("s_lshl_b32 s64, s64, 6"); A("s_lshl_b32 s10, s10, 5"); A("s_add_u32 s64, s64, s10")
    A("s_bfe_u32 s10, s9, 0x20001"); A("s_lshl_b32 s10, s10, 2"); A("s_add_u32 s64, s64, s10")
    A(f"v_and_b32 v{T+5}, 4, v1"); A(f"v_lshlrev_b32 v{T+5}, 2, v{T+5}"); A(f"v_add_u32 v{T+5}, s64, v{T+5}")
    A(f"v_mul_u32_u24 v{A_OUT}, 896, v{T+4}"); A(f"v_lshl_add_u32 v{A_OUT}, v{T+5}, 1, v{A_OUT}")
    A(f"v_lshrrev_b32 v{A_H}, 7, v{T+5}"); A(f"v_lshlrev_b32 v{A_H}, 9, v{A_H}"); A(f"v_lshl_add_u32 v{A_H}, v{T+4}, 11, v{A_H}")
    A(f"v_bfe_u32 v{T+6}, v{T+5}, 3, 4"); A(f"v_lshl_add_u32 v{A_H}, v{T+6}, 2, v{A_H}")
    A(f"v_and_b32 v{T+6}, 4, v{T+5}"); A(f"v_lshl_add_u32 v{A_H}, v{T+6}, 5, v{A_H}")
    srd(44, 34, None, 3584)
    for q in range(1, 4):
        A(f"s_mov_b32 s{70+2*q}, {0x000f000f << (4*q):#x}"); A(f"s_mov_b32 s{71+2*q}, {0x000f000f << (4*q):#x}")
    A("s_waitcnt lgkmcnt(0)")
    A("s_barrier")
    for q in range(4):
        for sk in range(2):
            for h in range(2):
                r = W2F + 8*q + 4*sk + 2*h
                A(f"ds_read_b64_tr_b16 v[{r}:{r+1}], v{A_W2} offset:{(32*sk+4*h)*928 + 32*q}")
    for k in range(16): A(f"v_mov_b32 v{DQ+k}, 0")
    A("s_cmp_lt_u32 s62, 4"); A("s_cbranch_scc1 L_f1wait")
    A("s_mov_b32 s52, -1"); A("s_mov_b32 s53, 0x33333333")
    A("s_lshl_b32 s50, s3, 12"); A(f"s_add_u32 s50, s50, {WS_YA}")
    A(f"s_and_b32 s9, s63, {R-1}"); A("s_lshl_b32 s9, s9, 7"); A("s_add_u32 s9, s9, s50"); A(f"s_mov_b32 s54, {SPIN if not skipy & 2 else 1}")
    A("s_lshl_b32 s10, s3, 11"); A(f"v_add_u32 v79, s10, v{A_L16}")
    if fst: stamp(5)
    A("L_polly:")
    A(f"buffer_load_dword v{T}, v2, s[12:15], s9 offen offset:2048 sc1")
    A("s_waitcnt vmcnt(0)")
    A(f"v_readfirstlane_b32 s10, v{T}")
    A("s_cmp_eq_u32 s10, 256"); A("s_cbranch_scc1 L_goty")
    spin_tail("L_polly", 1)
    A("L_goty:")
    A(f"buffer_load_dwordx4 v[{H}:{H+3}], v{A_L16}, s[12:15], s50 offen sc1")
    A(f"buffer_load_dwordx4 v[{H+4}:{H+7}], v{A_L16}, s[12:15], s50 offen offset:1024 sc1")
    A("s_waitcnt vmcnt(0)")
    stamp(7)
    for i in range(8): rbf(H + i)
    for i in range(8): A(f"v_add_f32 v{H+i}, v{H+i}, v{X+i}")
    for i in range(8): rbf(H + i)
    A(f"ds_write_b128 v79, v[{H}:{H+3}] offset:{L_H}")
    A(f"ds_write_b128 v79, v[{H+4}:{H+7}] offset:{L_H+1024}")
    layernorm(H, L_HN, True)
    A("L_f1wait:")
    A("s_waitcnt lgkmcnt(0)")
    if fst: stamp(2)
    A("s_barrier")
    if fst: stamp(3)
    for i in range(4): A(f"ds_read_b128 v[{AV+4*i}:{AV+4*i+3}], v{A_HN} offset:{L_HN+256*i}")
    for r in range(4): A(f"ds_read_b32 v{H+r}, v{A_H} offset:{L_H+64*(r>>1)+256*(r&1)}")
    for t in range(14):
        if t % 4 == 0: A(f"s_waitcnt lgkmcnt({7-t//4})")
        d = DQ + 4*(t&3); b = AV + 4*(t>>2)
        A(f"v_mfma_f32_16x16x32_bf16 v[{d}:{d+3}], v[{WQ+4*t}:{WQ+4*t+3}], v[{b}:{b+3}], v[{d}:{d+3}]")
    for r in range(4): A(f"v_add_f32_dpp v{DQ+8+r}, v{DQ+12+r}, v{DQ+8+r} row_shl:4 row_mask:0xf bank_mask:0xf")
    for r in range(4): A(f"v_add_f32_dpp v{DQ+r}, v{DQ+4+r}, v{DQ+r} row_shl:4 row_mask:0xf bank_mask:0xf")
    for r in range(4): A(f"v_add_f32_dpp v{T+r}, v{DQ+8+r}, v{DQ+r} row_shl:8 row_mask:0xf bank_mask:0xf")
    for r in range(4): rbf(T + r)
    A(f"v_permlane32_swap_b32 v{T}, v{T+2}"); A(f"v_permlane32_swap_b32 v{T+1}, v{T+3}")
    for i in range(2): A(f"v_mul_f32 v{T+4+i}, {hex(f2u(-1.4426950408889634))}, v{T+i}")
    for i in range(2): A(f"v_exp_f32 v{T+4+i}, v{T+4+i}")
    for i in range(2): A(f"v_add_f32 v{T+4+i}, 1.0, v{T+4+i}")
    for i in range(2): A(f"v_rcp_f32 v{T+4+i}, v{T+4+i}")
    for i in range(2): A(f"v_mul_f32 v{T+4+i}, v{T+4+i}, v{T+i}")
    for i in range(2): rbf(T + 4 + i)
    for i in range(2): A(f"v_mul_f32 v{T+4+i}, v{T+4+i}, v{T+2+i}")
    A(f"v_cvt_pk_bf16_f32 v{T}, v{T+4}, v{T+5}")
    A("s_mov_b32 exec_lo, 0x000f000f"); A("s_mov_b32 exec_hi, 0x000f000f")
    A(f"ds_write_b32 v{A_ACTW}, v{T} offset:{L_ACT}")
    A("s_mov_b64 exec, -1")
    RD = 64
    for k in range(4): A(f"v_mov_b32 v{RD+12+k}, 0")
    A(f"s_mov_b32 s54, {SPIN}")
    A("s_waitcnt lgkmcnt(0)")
    A("s_barrier")
    if fst: stamp(4)
    A("s_cmp_eq_u32 s62, 7"); A("s_cbranch_scc1 L_pollo")
    for sk in range(2): A(f"ds_read_b128 v[{AV+4*sk}:{AV+4*sk+3}], v{A_ACTR} offset:{L_ACT+64*sk}")
    for sk in range(2):
        A(f"s_waitcnt lgkmcnt({1-sk})")
        for q in range(4):
            d = DQ + 4*q; a = W2F + 8*q + 4*sk; c = f"v[{d}:{d+3}]" if sk else "0"
            A(f"v_mfma_f32_16x16x32_bf16 v[{d}:{d+3}], v[{a}:{a+3}], v[{AV+4*sk}:{AV+4*sk+3}], {c}")
    for q in range(1, 4):
        for r in range(4): A(f"v_cndmask_b32 v{DQ+r}, v{DQ+r}, v{DQ+4*q+r}, s[{70+2*q}:{71+2*q}]")
    for k in range(4): A(f"v_min_u32 v{DQ+k}, -2, v{DQ+k}")
    A(f"buffer_store_dwordx4 v[{DQ}:{DQ+3}], v{A_ST}, s[12:15], s68 offen sc1")
    if fst: stamp(0)
    A("s_cmp_eq_u32 s62, 6"); A("s_cbranch_scc0 L_done")
    A("L_pollo:")
    for i in range(3): A(f"buffer_load_dwordx4 v[{RD+4*i}:{RD+4*i+3}], v{A_L16}, s[12:15], s69 offen offset:{1024*i} sc1")
    A("s_mov_b32 exec_hi, 0")
    A(f"buffer_load_dwordx4 v[{RD+12}:{RD+15}], v{A_L16}, s[12:15], s69 offen offset:3072 sc1")
    A("s_mov_b32 exec_hi, -1")
    A("s_waitcnt vmcnt(0)")
    A(f"v_max_u32 v{T}, v{RD}, v{RD+1}")
    for i in range(2, 16, 2): A(f"v_max3_u32 v{T}, v{T}, v{RD+i}, v{RD+i+1}")
    A(f"v_cmp_eq_u32 vcc, -1, v{T}")
    A("s_cmp_eq_u64 vcc, 0"); A("s_cbranch_scc1 L_goto")
    spin_tail("L_pollo", 1)
    A("L_goto:")
    for k in range(8): A(f"v_add_f32 v{RD+k}, v{RD+k}, v{RD+8+k}")
    for k in range(4): A(f"v_add_f32 v{RD+k}, v{RD+k}, v{RD+4+k}")
    for k in range(4): A(f"v_add_f32_dpp v{RD+k}, v{RD+k}, v{RD+k} row_ror:8 row_mask:0xf bank_mask:0xf")
    for k in range(4): A(f"v_mov_b32 v{RD+4+k}, v{RD+k}")
    for k in range(4): A(f"v_permlane16_swap_b32 v{RD+k}, v{RD+4+k}")
    for k in range(4): A(f"v_add_f32 v{RD+k}, v{RD+k}, v{RD+4+k}")
    for k in range(4): A(f"v_mov_b32 v{RD+4+k}, v{RD+k}")
    for k in range(4): A(f"v_permlane32_swap_b32 v{RD+k}, v{RD+4+k}")
    for k in range(4): A(f"v_add_f32 v{RD+k}, v{RD+k}, v{RD+4+k}")
    for k in range(4): rbf(RD + k)
    for k in range(4): A(f"v_add_f32 v{RD+k}, v{RD+k}, v{H+k}")
    A(f"v_cvt_pk_bf16_f32 v{T+2}, v{RD}, v{RD+1}"); A(f"v_cvt_pk_bf16_f32 v{T+3}, v{RD+2}, v{RD+3}")
    A("s_mov_b64 exec, 0xff")
    A(f"buffer_store_dwordx2 v[{T+2}:{T+3}], v{A_OUT}, s[44:47], 0 offen")
    A("s_mov_b64 exec, -1")
    A("L_done:")
    if stamps:
        A("s_waitcnt vmcnt(0)")
        A("s_mov_b32 s3, s62")
        A("s_cmp_lt_u32 s62, 4"); A("s_cbranch_scc1 L_st1")
        A("s_memrealtime s[86:87]")
        A("L_st1:")
    write_stamps(True)
    A("s_endpgm")

    body = A.finish()
    out = HDR + f"; @launch grid=(256,1,1) block=(512,1,1) lds={LDS_SIZE}\n"
    out += f'.amdgcn_target "amdgcn-amd-amdhsa--gfx950"\n.text\n.globl {NAME}\n.p2align 8\n.type {NAME},@function\n'
    out += body
    out += f'''.section .rodata,"a"
.p2align 6
.amdhsa_kernel {NAME}
  .amdhsa_next_free_vgpr 256
  .amdhsa_next_free_sgpr 102
  .amdhsa_accum_offset 256
  .amdhsa_group_segment_fixed_size 0
  .amdhsa_kernarg_size 96
  .amdhsa_user_sgpr_count 2
  .amdhsa_user_sgpr_kernarg_segment_ptr 1
  .amdhsa_system_sgpr_workgroup_id_x 1
.end_amdhsa_kernel
'''
    return out

import struct
def f2u(f): return struct.unpack("<I", struct.pack("<f", f))[0]

if __name__ == "__main__":
    kw = eval("dict(" + (sys.argv[2] if len(sys.argv) > 2 else "") + ")")
    open(sys.argv[1], "w").write(gen(**kw))
```

```python
import sys, os
sys.path.insert(0, os.path.dirname(os.path.abspath(__file__)))
from asmlib import Asm

NAME = "sequential_preLN__mha_block_cached__glu_gated_swiglu__decode_kernel"
HDR = open(os.path.join(os.path.dirname(os.path.abspath(__file__)), "header.txt")).read()

WS_EP, WS_QX, WS_SX, WS_YA, WS_ZX, WS_TS = 0x0, 0x180000, 0x40000, 0x100000, 0x200000, 0x300000
WS_SIZE = 0x400000
L_P, L_Q, L_CNT, L_XN, L_ACC, L_H, L_HN, L_ACT, L_W = 0x0, 0x4000, 0x4200, 0x4800, 0x5000, 0x5800, 0x7800, 0x9000, 0xa000
LDS_SIZE = L_W + 448 * 256
NROLE = 28
DBG_TICKET = 16
SPIN = 200000

def gen(NG=13, D=8, stamps=False, wpol="", perload=True, dbg=False, skipw=0, nob1=False, nob2=False, TR=None, D0=None, R=4, fst=False, skipf=False, fpol='', opol='', qpol='', skipy=0, swap=0, touch=0, early=False, rot=0, qsl=1, ssl=2, qpre=False, nofill=0, spol='sc1', kpol='nt', vpol='nt', dbl=0, pp=False, ad=None, adl=3, sd=None, sdk=0, xs=0):
    if dbg: stamps = True
    A = Asm()
    nstamp = [0]; svc_mode = [False]
    def stamp(i, e=False):
        if early and not e and i in (1, 2, 3, 4, 5, 6, 7) and not (svc_mode[0] and i == 2): return
        if e and not early: return
        if stamps:
            A(f"s_memrealtime s[{84+2*i}:{85+2*i}]")
    def srd(d, base, off, size):
        if off is None:
            A(f"s_mov_b32 s{d}, s{base}"); A(f"s_mov_b32 s{d+1}, s{base+1}")
        else:
            A(f"s_add_u32 s{d}, s{base}, {off}"); A(f"s_addc_u32 s{d+1}, s{base+1}, 0")
        A(f"s_mov_b32 s{d+2}, {size}"); A(f"s_mov_b32 s{d+3}, 0x20000")
    def write_stamps(svc=False):
        if not stamps: return
        if dbg:
            if not svc: return
            A("s_cmp_eq_u32 s3, 4"); A("s_cbranch_scc0 L_exit")
            A("s_waitcnt lgkmcnt(0)")
            A("s_mov_b64 exec, 1")
            srd(40, 36, None, 256)
            A("v_mov_b32 v2, 0")
            A("s_not_b32 s84, s84")
            for i in range(8): A(f"v_mov_b32 v{8+i}, s{84+2*i}")
            for i in range(8):
                if not svc and i > 5: continue
                A(f"buffer_atomic_umax v{8+i}, v2, s[40:43], 0 offen offset:{(8+i)*4 if svc else (1+i)*4} sc1")
            A("s_waitcnt vmcnt(0)")
            return
        A("s_waitcnt lgkmcnt(0)")
        A("s_mov_b64 exec, 1")
        A("s_lshl_b32 s60, s2, 3"); A("s_add_u32 s60, s60, s3"); A("s_lshl_b32 s60, s60, 6"); A(f"s_add_u32 s60, s60, {WS_TS}")
        A("v_mov_b32 v2, 0")
        for i in range(8):
            A(f"v_mov_b32 v{8+i}, s{84+2*i}")
        A("s_getreg_b32 s61, hwreg(HW_REG_XCC_ID)")
        A("v_mov_b32 v16, s61")
        A("buffer_store_dwordx4 v[8:11], v2, s[12:15], s60 offen")
        A("buffer_store_dwordx4 v[12:15], v2, s[12:15], s60 offen offset:16")
        A("buffer_store_dword v16, v2, s[12:15], s60 offen offset:32")
        A("s_waitcnt vmcnt(0)")

    A(f"{NAME}:")
    A("s_cmp_ge_u32 s2, 256")
    A("s_cbranch_scc1 L_exit")
    if stamps:
        for i in range(8): A(f"s_mov_b32 s{84+2*i}, 0")
    stamp(0)
    if dbl: A("s_memrealtime s[82:83]")
    A("s_load_dwordx16 s[16:31], s[0:1], 0")
    A("s_load_dwordx8 s[32:39], s[0:1], 64")
    A("v_lshrrev_b32 v2, 6, v0")
    A("v_and_b32 v1, 63, v0")
    A("v_lshlrev_b32 v10, 2, v1"); A("v_mov_b32 v16, 0")
    A("v_readfirstlane_b32 s3, v2")
    A(f"ds_write_b32 v10, v16 offset:{L_CNT}")
    if swap == 1:
        A("s_bfe_u32 s4, s2, 0x20001"); A("s_and_b32 s9, s2, 1")
    elif swap == 3:
        A("s_bfe_u32 s10, s2, 0x10002"); A("s_mul_i32 s10, s10, 3"); A("s_and_b32 s4, s2, 1"); A("s_xor_b32 s4, s4, s10"); A("s_bfe_u32 s9, s2, 0x10001")
    elif swap < 4:
        A("s_and_b32 s4, s2, 1"); A("s_lshr_b32 s9, s2, 1"); A("s_and_b32 s10, s9, 2"); A("s_or_b32 s4, s4, s10"); A("s_and_b32 s9, s9, 1")
    if swap == 4:
        A("s_bfe_u32 s4, s2, 0x20005"); A("s_and_b32 s9, s2, 7"); A("s_lshr_b32 s10, s2, 7"); A("s_lshl3_add_u32 s6, s10, s9")
    elif swap == 5:
        A("s_lshr_b32 s4, s2, 6"); A("s_and_b32 s9, s2, 7"); A("s_bfe_u32 s10, s2, 0x10005"); A("s_lshl1_add_u32 s6, s9, s10")
    elif swap == 6:
        A("s_bfe_u32 s4, s2, 0x10005"); A("s_and_b32 s9, s2, 1"); A("s_lshl1_add_u32 s4, s9, s4")
        A("s_bfe_u32 s9, s2, 0x20001"); A("s_lshr_b32 s10, s2, 6"); A("s_lshl2_add_u32 s6, s10, s9")
    else:
        A("s_lshr_b32 s10, s2, 5"); A("s_lshl1_add_u32 s6, s10, s9")
    A("s_bfe_u32 s5, s2, 0x20003"); A("s_lshl4_add_u32 s7, s5, s6")
    A("v_lshrrev_b32 v3, 3, v1"); A("v_and_b32 v4, 7, v1")
    A("s_lshl2_add_u32 s10, s7, s4"); A("s_lshl_b32 s10, s10, 19")
    A("v_lshlrev_b32 v6, 9, v3"); A("v_lshl_add_u32 v6, v4, 4, v6")
    A("v_lshl_add_u32 v5, v2, 12, v6")
    NK = 32 + xs
    if xs:
        A("s_sub_u32 s42, 4, s4"); A("s_lshl_b32 s42, s42, 19")
        A("s_lshl_b32 s52, s4, 14"); A("s_add_u32 s52, s52, s42"); A(f"s_sub_u32 s52, s52, {1<<19}")
    else: A(f"s_mov_b32 s42, {512<<10}")
    A("s_mov_b32 s43, 0x20000")
    A("s_cmp_ge_u32 s3, 4")
    A("s_waitcnt lgkmcnt(0)")
    stamp(1, True)
    A("s_barrier")
    A("s_cbranch_scc1 L_service")

    RING = 256 - NG * 16
    Q = RING - 16
    assert Q >= 24
    A("s_add_u32 s40, s18, s10"); A("s_addc_u32 s41, s19, 0")
    def common():
        A("s_andn2_b32 s8, s2, 24")
        A("s_mov_b32 s62, s3")
        srd(12, 38, None, WS_SIZE)
    def acc_addr(v, t):
        A(f"v_bfe_u32 v{t}, v1, 4, 1"); A(f"v_lshlrev_b32 v{t}, 4, v{t}"); A(f"v_lshl_add_u32 v{t}, v4, 5, v{t}")
        A(f"v_lshrrev_b32 v{v}, 5, v1"); A(f"v_lshl_add_u32 v{v}, v{v}, 8, v{t}")
        A("s_lshl_b32 s9, s3, 9"); A(f"v_add_u32 v{v}, s9, v{v}")
    def acc_sum(dst, addr):
        for i in range(4): A(f"ds_read2st64_b32 v[{dst+2*i}:{dst+2*i+1}], v{addr} offset0:{L_ACC//256+2*i} offset1:{L_ACC//256+2*i+1}")
        A("s_waitcnt lgkmcnt(0)")
        for i in range(4): A(f"v_add_f32 v{dst+i}, v{dst+i}, v{dst+4+i}")
        A(f"v_add_f32 v{dst}, v{dst}, v{dst+1}"); A(f"v_add_f32 v{dst+2}, v{dst+2}, v{dst+3}"); A(f"v_add_f32 v{dst}, v{dst}, v{dst+2}")
    ops = []
    def wait_for(tag):
        idx = max(i for i, t in enumerate(ops) if t == tag)
        n = len(ops) - 1 - idx
        A(f"s_waitcnt vmcnt({min(n,63)})")
    landed = set()
    def throttle(n):
        if len(ops) > n:
            A(f"s_waitcnt vmcnt({n})")
            for t in ops[:len(ops) - n]: landed.add(t)
            for t in ops[len(ops) - n:]: landed.discard(t)
    cur = [None]; nlab = [0]
    def throttle_ad():
        _, _, _, d1, d2, d3 = cur[0]
        throttle(d3 - 1)
        lab = f"L_ad{nlab[0]}"; nlab[0] += 1
        if d2 < d3: A(f"s_cbranch_scc1 {lab}"); A(f"s_waitcnt vmcnt({d2-1})")
        if d1 < d2: A(f"s_cbranch_vccnz {lab}"); A(f"s_waitcnt vmcnt({d1-1})")
        A(f"{lab}:")
    def setflags():
        if cur[0] is None: return
        A(f"s_cmp_ge_u32 s53, {cur[0][1]}"); A("s_cselect_b64 vcc, -1, 0"); A(f"s_cmp_ge_u32 s53, {cur[0][2]}")
    def checkpoint(e):
        for cp in sd or []:
            if cp[0] == e: cur[0] = cp; setflags()
        for i, cp in enumerate(ad or []):
            if cp[0] == e:
                A("s_mov_b64 exec, 1"); A(f"v_mov_b32 v{22+(i&1)}, 1")
                A(f"buffer_atomic_add v{22+(i&1)}, v21, s[56:59], 0 offen offset:{24+4*i} sc0 sc1")
                A("s_mov_b64 exec, -1")
                ops.append(f"tk{i}")
            if cp[0] + adl == e:
                if f"tk{i}" not in landed: wait_for(f"tk{i}")
                A(f"v_readfirstlane_b32 s53, v{22+(i&1)}")
                cur[0] = cp
                setflags()
    def issue(e):
        r = RING + (e % NG) * 16
        if rot and (e < 32 or rot & 64):
            if e == 0: A(f"s_mul_i32 s59, s2, {rot & 63}"); A("s_lshr_b32 s48, s2, 3"); A("s_add_u32 s59, s59, s48")
            A(f"s_add_u32 s48, s59, {e}"); A("s_and_b32 s48, s48, 31"); A(f"s_lshl_b32 s48, s48, {14 if e < 32 else 16}")
        elif e < xs: A("s_mov_b32 s48, s52")
        elif e < NK: A(f"s_mov_b32 s48, {(e-xs)*16384}")
        else: A(f"s_mov_b32 s48, {(e-NK)*65536}")
        if not perload: throttle(D - 4)
        for j in range(4):
            if cur[0]: throttle_ad()
            elif perload: throttle((D0 if (D0 and e < NG) else D) - 1)
            if e < NK: A(f"buffer_load_dwordx4 v[{r+4*j}:{r+4*j+3}], v5, s[40:43], s48 offen offset:{128*j} {kpol}")
            else: A(f"buffer_load_dwordx4 v[{r+4*j}:{r+4*j+3}], v{6+j}, s[44:47], s48 offen {vpol}")
            ops.append(e)
    def consume_k(c):
        if c not in landed: wait_for(c)
        r = RING + (c % NG) * 16
        for j in range(4): A(f"v_mov_b32 v{12+j}, 0")
        for k in range(4):
            for j in range(4): A(f"v_dot2c_f32_bf16 v{12+j}, v{r+4*j+k}, v{Q+4*j+k}")
        A("v_add_f32 v12, v12, v13"); A("v_add_f32 v14, v14, v15"); A("v_add_f32 v12, v12, v14")
        A("v_add_f32_dpp v12, v12, v12 quad_perm:[1,0,3,2] row_mask:0xf bank_mask:0xf")
        A("v_add_f32_dpp v12, v12, v12 quad_perm:[2,3,0,1] row_mask:0xf bank_mask:0xf")
        A("v_add_f32_dpp v12, v12, v12 row_half_mirror row_mask:0xf bank_mask:0xf")
        c -= xs
        if c < 0:
            A("v_cvt_pk_bf16_f32 v18, v12, v12"); A("v_pk_min_u16 v18, v18, s51")
            A("s_lshl_b32 s9, 0x01010101, s4"); A("s_mov_b32 exec_lo, s9"); A("s_mov_b32 exec_hi, s9")
            A("buffer_store_short v18, v10, s[12:15], s50 offen sc1")
            A("s_mov_b64 exec, -1")
            return
        dst = 16 + ((c >> 3) & 1)
        A(f"v_cndmask_b32 v{dst}, v{dst}, v12, s[{64+2*(c&7)}:{65+2*(c&7)}]")
        if c % 16 == 15:
            A("v_cvt_pk_bf16_f32 v18, v16, v17")
            A("v_pk_min_u16 v18, v18, s51" if xs else "v_min_u32 v18, -2, v18")
            if xs and c == 15:
                A("s_cmp_eq_u32 s4, 3"); A("s_cbranch_scc0 L_st15")
                A("s_mov_b32 exec_lo, 0x07070707"); A("s_mov_b32 exec_hi, 0x07070707")
                A("buffer_store_short_d16_hi v18, v10, s[12:15], s49 offen offset:2 sc1")
                A("s_mov_b32 exec_lo, 0xf8f8f8f8"); A("s_mov_b32 exec_hi, 0xf8f8f8f8")
                A("L_st15:")
            A(f"buffer_store_dword v18, v10, s[12:15], s49 offen offset:{256*(c>>4)} sc1")
            if xs and c == 15: A("s_mov_b64 exec, -1")
            ops.append("st")
    PM, PA, PP, ACC = Q, Q + 4, 12, Q + 12
    def read_p(c):
        A(f"ds_read_b128 v[{PP+4*(c&1)}:{PP+4*(c&1)+3}], v11 offset:{L_P + c*512}")
    def consume_v(c):
        e = NK + c
        A("s_waitcnt lgkmcnt(0)")
        if c + 1 < 32: read_p(c + 1)
        if e not in landed: wait_for(e)
        r = RING + (e % NG) * 16
        p = PP + 4 * (c & 1)
        def ands(j):
            for k in range(4): A(f"v_and_b32 v{PA+4*(j&1)+k}, v{p+j}, v{PM+k}")
        def mf(j):
            a = PA + 4 * (j & 1)
            A(f"v_mfma_f32_16x16x32_bf16 v[{ACC}:{ACC+3}], v[{a}:{a+3}], v[{r+4*j}:{r+4*j+3}], v[{ACC}:{ACC+3}]")
        ands(0); ands(1); mf(0); ands(2); mf(1); ands(3); mf(2); mf(3)

    first = ((D0 or D) + 3) // 4
    if xs:
        A("s_cmp_eq_u32 s4, 3"); A("s_cbranch_scc0 L_p0")
        for e in range(first): issue(4 + e)
        A("s_branch L_p1")
        del ops[:]; landed.clear()
        A("L_p0:")
    for e in range(first): issue(e)
    A("L_p1:")
    stamp(2, True)
    common()
    A("s_lshl_b32 s9, s7, 21")
    A("s_lshl_b32 s10, s4, 7"); A(f"s_sub_u32 s11, {2<<20}, s10"); A("s_add_u32 s10, s10, s9")
    srd(44, 20, "s10", "s11")
    A("v_lshl_add_u32 v6, v2, 14, v6")
    for j in range(1, 4): A(f"v_add_u32 v{6+j}, {4096*j}, v6")
    A("s_lshl_b32 s49, s7, 13"); A("s_lshl_b32 s9, s4, 11"); A("s_add_u32 s49, s49, s9")
    A("s_lshl_b32 s9, s3, 9"); A("s_add_u32 s49, s49, s9"); A(f"s_add_u32 s49, s49, {WS_SX}")
    A("v_lshlrev_b32 v11, 4, v3"); A("s_lshl_b32 s9, s3, 7"); A("v_add_u32 v11, s9, v11")
    for c in range(8):
        A(f"s_mov_b32 s{64+2*c}, {0x01010101 << c:#x}"); A(f"s_mov_b32 s{65+2*c}, {0x01010101 << c:#x}")
    A("v_mov_b32 v17, 0")
    if xs:
        A("s_mov_b32 s51, 0xfffefffe"); A("s_or_b32 s50, s49, 0x1800")
        A("s_cmp_eq_u32 s4, 3"); A(f"s_cbranch_scc1 L_p2")
    if ad: srd(56, 36, None, 256); A("v_lshlrev_b32 v21, 6, v2")
    if sd and sdk == 0: A("s_mov_b32 s53, s4")
    if sd and sdk == 1: A("s_cmp_eq_u32 s4, 3"); A("s_cselect_b32 s53, 1, 0"); A("s_and_b32 s9, s2, 1"); A("s_add_u32 s53, s53, s9")
    stamp(3, True)
    kc = 0; vc = 0
    def b1():
        stamp(6)
        if not nob1: A("s_barrier")
        stamp(1)
        A("v_lshlrev_b32 v19, 4, v4")
        for j in range(4): A(f"ds_read_b128 v[{Q+4*j}:{Q+4*j+3}], v19 offset:{L_Q+128*j}")
        A("s_waitcnt lgkmcnt(0)")
    for e in range(first, NK + 32):
        if xs and e == 4 + first: A("L_p2:")
        if e == 3: stamp(4, True)
        if e == 4: stamp(5, True)
        if e == 6: stamp(6, True)
        if e == 10: stamp(7, True)
        if e - NG >= 0 and e - NG < NK and kc <= e - NG:
            skip = xs and kc < 4
            if skip: A("s_cmp_eq_u32 s4, 3"); A(f"s_cbranch_scc1 L_sk{kc}")
            if kc == 0: b1()
            if xs and kc == 4:
                A("s_cmp_eq_u32 s4, 3"); A("s_cbranch_scc0 L_sk4"); b1(); A("L_sk4:")
            consume_k(kc)
            if skip: A(f"L_sk{kc}:")
            kc += 1
        if e >= NK:
            while kc < NK and kc in landed:
                consume_k(kc); kc += 1
                if kc == NK:
                    stamp(2)
                    A("s_mov_b64 exec, 1"); A(f"v_mov_b32 v19, {L_CNT+4}"); A("v_mov_b32 v18, 1")
                    A("ds_add_u32 v19, v18"); A("s_mov_b64 exec, -1")
                    A("v_and_b32 v19, 1, v1"); A("v_cmp_eq_u32 vcc, 1, v19")
                    A("v_mov_b32 v18, 0xffff"); A("v_mov_b32 v19, 0xffff0000"); A("v_cndmask_b32 v18, v18, v19, vcc")
                    A("v_lshrrev_b32 v19, 1, v4")
                    for k in range(4):
                        A(f"v_cmp_eq_u32 vcc, {k}, v19"); A(f"v_cndmask_b32 v{PM+k}, 0, v18, vcc")
                    for k in range(4): A(f"v_mov_b32 v{ACC+k}, 0")
                    acc_addr(10, 18)
                    setflags()
        if e - NG >= NK:
            assert kc == NK
            if vc == 0:
                stamp(7)
                if not nob2: A("s_barrier")
                stamp(3)
                read_p(0)
            consume_v(vc); vc += 1
        checkpoint(e)
        issue(e)
    while vc < 32:
        consume_v(vc); vc += 1
    stamp(4)
    A("s_mov_b32 exec_lo, 0x00ff00ff"); A("s_mov_b32 exec_hi, 0xff00ff00")
    A(f"ds_write_b128 v10, v[{ACC}:{ACC+3}] offset:{L_ACC}")
    A("s_waitcnt lgkmcnt(0)")
    A("s_mov_b64 exec, -1")
    A("s_barrier")
    stamp(5)
    A(f"v_mov_b32 v19, {L_CNT}")
    A("ds_read_b32 v18, v19 offset:12")
    A("s_waitcnt lgkmcnt(0)")
    A("v_readfirstlane_b32 s63, v18")
    A("s_sub_u32 s63, s63, 1")
    A(f"s_cmp_lt_u32 s63, {NROLE}"); A("s_cbranch_scc1 L_sffn")
    write_stamps()
    A("L_exit:")
    A("s_endpgm")
    A("L_sffn:")
    X = 8
    T = 16
    AV = 40
    MK = 56
    MN = 60
    AS = 64
    DD = 72
    TG = 76
    WQ = 80
    WO = 136
    W3S = 200
    W2F, DQ, AD = 136, 168, 184
    def tr_w13():
        a = T + 12
        A(f"v_lshrrev_b32 v{a+2}, 4, v1"); A(f"v_bfe_u32 v{a+3}, v1, 2, 2")
        A(f"v_lshlrev_b32 v{a}, 9, v{a+2}"); A(f"v_lshl_add_u32 v{a}, v{a+3}, 11, v{a}")
        A(f"v_and_b32 v{a+2}, 1, v{a+2}"); A(f"v_lshl_add_u32 v{a+3}, v{a+2}, 2, v{a+3}")
        A(f"v_and_b32 v{a+2}, 2, v1"); A(f"v_lshl_add_u32 v{a+3}, v{a+2}, 2, v{a+3}")
        A(f"v_add_u32 v{a+3}, s62, v{a+3}"); A(f"v_and_b32 v{a+3}, 15, v{a+3}")
        A(f"v_lshl_add_u32 v{a}, v{a+3}, 4, v{a}")
        A(f"v_and_b32 v{a+2}, 1, v1"); A(f"v_lshl_add_u32 v{a}, v{a+2}, 3, v{a}")
        A(f"v_add_u32 v{a}, {L_W}, v{a}"); A(f"v_add_u32 v{a+1}, 0x10000, v{a}")
        for t in range(14):
            for h in range(2):
                A(f"ds_read_b64_tr_b16 v[{WQ+4*t+2*h}:{WQ+4*t+2*h+1}], v{a+(t>>3)} offset:{(t&7)*8192+h*256}")
    tr_w13()
    A("s_waitcnt lgkmcnt(0)")
    A("s_barrier")
    A("s_branch L_ffn")

    A("L_service:")
    svc_mode[0] = True
    common()
    A("s_sub_u32 s3, s3, 4")
    A("s_mul_i32 s9, s3, 896"); srd(40, 16, "s9", 896)
    A("v_lshrrev_b32 v5, 5, v1"); A("v_mul_u32_u24 v5, 14, v5"); A("v_and_b32 v6, 3, v1"); A("v_lshl_add_u32 v5, v6, 2, v5")
    A("v_bfe_u32 v6, v1, 2, 2"); A("v_lshlrev_b32 v6, 1, v6"); A("v_bfe_u32 v7, v1, 4, 1"); A("v_add_u32 v6, v6, v7")
    A("v_lshl_add_u32 v7, v5, 3, v6"); A("v_lshlrev_b32 v7, 1, v7")
    for u in range(2):
        for e in range(4): A(f"buffer_load_ushort v{X+4*u+e}, v7, s[40:43], 0 offen offset:{u*448+e*16}")
    A("v_mov_b32 v2, 0"); A("s_lshl_b32 s50, s6, 7")
    A(f"buffer_load_dword v{TG}, v2, s[12:15], s50 offen sc1")
    A("s_lshl_b32 s9, s6, 9"); A("s_lshl_b32 s10, s4, 7"); A("s_add_u32 s9, s9, s10")
    A(f"s_mul_i32 s10, s5, {112*8192}"); A("s_add_u32 s9, s9, s10")
    srd(44, 22, "s9", 111*8192 + 128)
    A(f"v_lshlrev_b32 v{T}, 13, v3"); A(f"v_lshl_add_u32 v{T}, v4, 4, v{T}")
    A("s_lshl_b32 s9, s3, 16"); A(f"v_add_u32 v{T}, s9, v{T}")
    for t in range(4):
        if t: A(f"v_add_u32 v{T}, {4*65536}, v{T}")
        A(f"buffer_load_dwordx4 v[{WQ+4*t}:{WQ+4*t+3}], v{T}, s[44:47], 0 offen {qpol}")
    stamp(3, True)
    A("v_lshlrev_b32 v78, 8, v6"); A("v_lshrrev_b32 v5, 5, v1"); A("v_lshl_add_u32 v78, v5, 6, v78")
    A("v_and_b32 v5, 3, v1"); A("v_lshl_add_u32 v78, v5, 4, v78")
    A("s_lshl_b32 s10, s3, 11"); A("v_add_u32 v78, s10, v78")
    A("s_lshl_b32 s9, s5, 6"); A("s_add_u32 s9, s9, s10"); A("v_lshlrev_b32 v79, 8, v3"); A("v_add_u32 v79, s9, v79")
    for k in range(4): A(f"v_mov_b32 v{T+4+k}, -1")
    for k in range(4): A(f"v_mov_b32 v{T+8+k}, 0")
    A(f"v_lshlrev_b32 v{T+1}, 4, v1")
    A("s_cmp_eq_u32 s3, 0"); A("s_cbranch_scc0 L_f1")
    A("s_lshl_b32 s9, s7, 13"); A("s_lshl_b32 s10, s4, 11"); A("s_add_u32 s9, s9, s10"); A(f"s_add_u32 s9, s9, {WS_SX}")
    if not nofill & 1:
        A(f"buffer_store_dwordx4 v[{T+4}:{T+7}], v{T+1}, s[12:15], s9 offen {spol}")
        A(f"buffer_store_dwordx4 v[{T+4}:{T+7}], v{T+1}, s[12:15], s9 offen offset:1024 {spol}")
    A("s_branch L_f3")
    A("L_f1:")
    A("s_cmp_eq_u32 s3, 1"); A("s_cbranch_scc0 L_f2")
    A("s_lshl_b32 s9, s2, 10"); A(f"s_add_u32 s9, s9, {WS_ZX}")
    if not nofill & 2: A(f"buffer_store_dwordx4 v[{T+4}:{T+7}], v{T+1}, s[12:15], s9 offen {spol}")
    A("s_branch L_f3")
    A("L_f2:")
    A("s_cmp_eq_u32 s3, 2"); A("s_cbranch_scc0 L_f3")
    A("s_cmp_eq_u32 s8, 0"); A("s_cbranch_scc0 L_f3")
    A("s_lshl_b32 s9, s5, 12"); A(f"s_add_u32 s9, s9, {WS_YA}")
    for k in range(3): A(f"buffer_store_dwordx4 v[{T+8}:{T+11}], v{T+1}, s[12:15], s9 offen offset:{1024*k} sc1")
    A("L_f3:")
    A(f"v_and_b32 v{T}, 1, v1"); A(f"v_cmp_eq_u32 vcc, 1, v{T}")
    A(f"v_mov_b32 v{T+2}, 0xffff"); A(f"v_mov_b32 v{T+3}, 0xffff0000"); A(f"v_cndmask_b32 v{T+2}, v{T+2}, v{T+3}, vcc")
    A(f"v_lshrrev_b32 v{T}, 1, v4")
    for k in range(4):
        A(f"v_cmp_eq_u32 vcc, {k}, v{T}"); A(f"v_cndmask_b32 v{MK+k}, 0, v{T+2}, vcc")
    A(f"v_bfe_u32 v{T}, v1, 1, 3")
    for k in range(4):
        A(f"v_cmp_eq_u32 vcc, {2*k}, v{T}"); A(f"v_cndmask_b32 v{MN+k}, 0, v{T+2}, vcc")
    A("s_mov_b32 s52, 0x77777777"); A("s_mov_b32 s53, 0x77777777")

    def wave_sum(v, tmp_s, op="add"):
        A(f"v_{op}_f32_dpp v{v}, v{v}, v{v} quad_perm:[1,0,3,2] row_mask:0xf bank_mask:0xf")
        A(f"v_{op}_f32_dpp v{v}, v{v}, v{v} quad_perm:[2,3,0,1] row_mask:0xf bank_mask:0xf")
        A(f"v_{op}_f32_dpp v{v}, v{v}, v{v} row_half_mirror row_mask:0xf bank_mask:0xf")
        A(f"v_{op}_f32_dpp v{v}, v{v}, v{v} row_mirror row_mask:0xf bank_mask:0xf")
        for i in range(4): A(f"v_readlane_b32 s{tmp_s+i}, v{v}, {16*i}")
        A(f"v_mov_b32 v{v}, s{tmp_s}")
        for i in range(1, 4): A(f"v_{op}_f32 v{v}, s{tmp_s+i}, v{v}")
    def rbf(v, dst=None):
        dst = v if dst is None else dst
        A(f"v_cvt_pk_bf16_f32 v{dst}, v{v}, v{v}"); A(f"v_and_b32 v{dst}, 0xffff0000, v{dst}")
    def layernorm(S, table, ffn=False):
        s = T; d = T + 4
        A(f"v_add_f32 v{s}, v{S}, v{S+1}"); A(f"v_add_f32 v{s+1}, v{S+2}, v{S+3}")
        A(f"v_add_f32 v{s+2}, v{S+4}, v{S+5}"); A(f"v_add_f32 v{s+3}, v{S+6}, v{S+7}")
        A(f"v_add_f32 v{s}, v{s}, v{s+1}"); A(f"v_add_f32 v{s+2}, v{s+2}, v{s+3}"); A(f"v_add_f32 v{s}, v{s}, v{s+2}")
        wave_sum(s, 56)
        A(f"v_mul_f32 v{s}, {1.0/448:.10e}, v{s}")
        for i in range(8): A(f"v_sub_f32 v{d+i}, v{S+i}, v{s}")
        for i in ((4, 5, 6, 7) if ffn else (2, 3, 6, 7)): A(f"v_cndmask_b32 v{d+i}, 0, v{d+i}, s[52:53]")
        A(f"v_mul_f32 v{s+1}, v{d}, v{d}"); A(f"v_mul_f32 v{s+2}, v{d+1}, v{d+1}")
        for i in range(2, 8): A(f"v_fmac_f32 v{s+1+(i&1)}, v{d+i}, v{d+i}")
        A(f"v_add_f32 v{s+1}, v{s+1}, v{s+2}")
        rbf(s)
        wave_sum(s + 1, 56)
        for i in range(8): A(f"v_sub_f32 v{d+i}, v{S+i}, v{s}")
        A(f"v_mul_f32 v{s+1}, {1.0/448:.10e}, v{s+1}")
        rbf(s + 1)
        A(f"v_add_f32 v{s+1}, 0x3727c5ac, v{s+1}")
        rbf(s + 1)
        A(f"v_sqrt_f32 v{s+1}, v{s+1}")
        for i in range(8): rbf(d + i)
        rbf(s + 1)
        A(f"v_rcp_f32 v{s+1}, v{s+1}")
        for i in range(8): A(f"v_mul_f32 v{d+i}, v{d+i}, v{s+1}")
        if ffn:
            for i in range(4): A(f"v_cvt_pk_bf16_f32 v{d+i}, v{d+2*i}, v{d+2*i+1}")
            for u in range(2): A(f"ds_write_b64 v78, v[{d+2*u}:{d+2*u+1}] offset:{table + u*512}")
            return
        for i in range(8): A(f"v_cvt_pk_bf16_f32 v{d+i}, v{d+i}, v{d+i}")
        A(f"ds_write_b128 v78, v[{d}:{d+3}] offset:{table}")
        A(f"ds_write_b128 v78, v[{d+4}:{d+7}] offset:{table+128}")
        A("s_waitcnt lgkmcnt(0)")
        for i in range(4): A(f"ds_read_b128 v[{AV+4*i}:{AV+4*i+3}], v79 offset:{table+16*i}")
    def gemv_k(W, n, lg=False):
        def ands(t):
            for k in range(4): A(f"v_and_b32 v{AS+4*(t&1)+k}, v{AV+t}, v{MK+k}")
        for k in range(4): A(f"v_mov_b32 v{DD+k}, 0")
        ands(0)
        for t in range(n):
            if t + 1 < n: ands(t + 1)
            a = AS + 4 * (t & 1)
            if lg: A(f"s_waitcnt lgkmcnt({n-1-t})")
            A(f"v_mfma_f32_16x16x32_bf16 v[{DD}:{DD+3}], v[{a}:{a+3}], v[{W+4*t}:{W+4*t+3}], v[{DD}:{DD+3}]")
    def gemv_n(W, n, val):
        def ands(t):
            for k in range(4): A(f"v_and_b32_dpp v{AS+4*(t&1)+k}, v{val}, v{MN+k} row_newbcast:{t} row_mask:0xf bank_mask:0xf")
        for k in range(4): A(f"v_mov_b32 v{DD+k}, 0")
        ands(0)
        for t in range(n):
            if t + 1 < n: ands(t + 1)
            a = AS + 4 * (t & 1)
            A(f"v_mfma_f32_16x16x32_bf16 v[{DD}:{DD+3}], v[{a}:{a+3}], v[{W+4*t}:{W+4*t+3}], v[{DD}:{DD+3}]")
    def spin_tail(lbl, sl=1):
        A(f"s_sleep {sl}"); A("s_sub_u32 s54, s54, 1"); A("s_cmp_lg_u32 s54, 0"); A(f"s_cbranch_scc1 {lbl}")

    A("s_waitcnt vmcnt(5)")
    stamp(4, True)
    for i in range(8): A(f"v_lshlrev_b32 v{X+i}, 16, v{X+i}")
    for i in (2, 3, 6, 7): A(f"v_cndmask_b32 v{X+i}, 0, v{X+i}, s[52:53]")
    layernorm(X, L_P)
    acc_addr(5, 6)
    A(f"v_lshlrev_b32 v{T+1}, 4, v1"); A("s_lshl_b32 s9, s3, 10"); A(f"v_add_u32 v{T+2}, s9, v{T+1}")
    A(f"v_mov_b32 v{T+3}, {L_CNT}"); A(f"v_mov_b32 v{T+4}, 1"); A(f"s_mov_b32 s54, {SPIN*8}")
    A("s_waitcnt vmcnt(0)")
    stamp(5, True)
    for t in range(4): A(f"ds_write_b128 v{T+2}, v[{WQ+4*t}:{WQ+4*t+3}] offset:{L_W+4096*t}")
    A("s_waitcnt lgkmcnt(0)")
    A("s_mov_b64 exec, 1")
    A(f"ds_add_u32 v{T+3}, v{T+4}")
    A("s_mov_b64 exec, -1")
    A("L_pollw:")
    A(f"ds_read_b32 v{T}, v{T+3}")
    A("s_waitcnt lgkmcnt(0)")
    A(f"v_readfirstlane_b32 s10, v{T}")
    A("s_cmp_eq_u32 s10, 4"); A("s_cbranch_scc1 L_gotw")
    spin_tail("L_pollw", 1)
    A("L_gotw:")
    stamp(1)
    for t in range(14): A(f"ds_read_b128 v[{WQ+4*t}:{WQ+4*t+3}], v{T+1} offset:{L_W+1024*t}")
    A(f"v_add_u32 v{TG}, 0x9e3779b9, v{TG}")
    A(f"v_lshlrev_b32 v{T+2}, 3, v1")
    A("s_lshl_b32 s9, s6, 15"); A(f"s_add_u32 s9, s9, {WS_QX}")
    A("s_lshl_b32 s51, s5, 13"); A("s_add_u32 s51, s51, s9"); A("s_lshl_b32 s10, s3, 11"); A("s_add_u32 s51, s51, s10")
    A("s_lshl_b32 s10, s3, 13"); A("s_add_u32 s9, s9, s10"); A("s_lshl_b32 s10, s4, 11"); A("s_add_u32 s9, s9, s10")
    A("s_lshl_b32 s10, s5, 9"); A("s_add_u32 s9, s9, s10")
    A(f"v_lshlrev_b32 v{T}, 2, v1"); A("s_lshl_b32 s10, s3, 9"); A(f"v_add_u32 v{T}, s10, v{T}")
    gemv_k(WQ, 14, True)
    A("s_mov_b32 exec_lo, 0x00ff00ff"); A("s_mov_b32 exec_hi, 0xff00ff00")
    A(f"ds_write_b128 v5, v[{DD}:{DD+3}] offset:{L_ACC}")
    A("s_mov_b64 exec, -1")
    A(f"ds_read2st64_b32 v[{T+4}:{T+5}], v{T} offset0:{L_ACC//256} offset1:{L_ACC//256+1}")
    A("s_waitcnt lgkmcnt(0)")
    A(f"v_add_f32 v{T+4}, v{T+4}, v{T+5}")
    A(f"v_mov_b32 v{T+5}, v{TG}")
    if not nofill & 4: A(f"buffer_store_dwordx2 v[{T+4}:{T+5}], v{T+2}, s[12:15], s9 offen {spol}")
    stamp(6, True)
    A("s_cmp_eq_u32 s3, 2"); A("s_cbranch_scc0 L_noflag")
    A("s_cmp_eq_u32 s8, 0"); A("s_cbranch_scc0 L_noflag")
    srd(40, 36, None, 256)
    A("s_lshl_b32 s9, s5, 6"); A(f"v_mov_b32 v{T+6}, 1"); A("s_mov_b64 exec, 1")
    A(f"buffer_store_dword v{T+6}, v2, s[40:43], s9 offen sc1")
    A("s_mov_b64 exec, -1")
    A("L_noflag:")
    A(f"s_mov_b32 s54, {SPIN if not nofill & 4 else 1}")
    if qpre:
        A(f"v_lshlrev_b32 v{T+3}, 9, v1"); A("s_mov_b64 exec, 15")
        A("L_pollq0:")
        A(f"buffer_load_dword v{T+5}, v{T+3}, s[12:15], s51 offen offset:508 sc1")
        A("s_waitcnt vmcnt(0)")
        A(f"v_cmp_eq_u32 vcc, v{T+5}, v{TG}")
        A("s_cmp_eq_u64 vcc, 15"); A("s_cbranch_scc1 L_gotq0")
        spin_tail("L_pollq0", qsl)
        A("L_gotq0:")
        A("s_mov_b64 exec, -1"); A(f"s_mov_b32 s54, {SPIN}")
    A("L_pollq:")
    for k in range(4): A(f"buffer_load_dwordx2 v[{T+4+2*k}:{T+5+2*k}], v{T+2}, s[12:15], s51 offen offset:{512*k} sc1")
    A("s_waitcnt vmcnt(0)")
    for k in range(4): A(f"v_xor_b32 v{T+5+2*k}, v{T+5+2*k}, v{TG}")
    A(f"v_or_b32 v{T+5}, v{T+5}, v{T+7}"); A(f"v_or3_b32 v{T+5}, v{T+5}, v{T+9}, v{T+11}")
    A(f"v_cmp_eq_u32 vcc, 0, v{T+5}")
    A("s_cmp_eq_u64 vcc, -1"); A("s_cbranch_scc1 L_gotq")
    spin_tail("L_pollq", qsl)
    A("L_gotq:")
    A(f"v_add_f32 v{T+4}, v{T+4}, v{T+6}"); A(f"v_add_f32 v{T+8}, v{T+8}, v{T+10}"); A(f"v_add_f32 v{T+4}, v{T+4}, v{T+8}")
    A(f"v_cvt_pk_bf16_f32 v{T+4}, v{T+4}, v{T+4}")
    A(f"v_lshlrev_b32 v{T}, 1, v1"); A("s_lshl_b32 s9, s3, 7"); A(f"v_add_u32 v{T}, s9, v{T}")
    A(f"ds_write_b16 v{T}, v{T+4} offset:{L_Q}")
    stamp(2)
    if touch:
        A("s_lshl_b32 s9, s7, 21"); A("s_lshl_b32 s10, s4, 7"); A("s_add_u32 s10, s10, s9"); A("s_lshl_b32 s11, s3, 19"); A("s_add_u32 s10, s10, s11")
        srd(40, 20, "s10", (512 << 10) - 384)
        A(f"v_mul_u32_u24 v{T+12}, {touch*1024}, v1")
        A(f"buffer_load_dword v{T+13}, v{T+12}, s[40:43], 0 offen nt")
        A("s_lshl_b32 s10, s4, 19"); A("s_add_u32 s10, s10, s9"); A("s_lshl_b32 s11, s3, 17"); A("s_add_u32 s10, s10, s11")
        srd(40, 18, "s10", 128 << 10)
        A(f"buffer_load_dword v{T+14}, v{T+12}, s[40:43], 0 offen nt")
    def tr():
        if TR is not None: A(f"s_waitcnt vmcnt({TR})")
    if TR is not None:
        A("s_waitcnt lgkmcnt(0)")
        if not nob1: A("s_barrier")
    A("s_lshl_b32 s9, s6, 2"); A("s_add_u32 s9, s9, s4"); A(f"s_mul_i32 s9, s9, {64*896}")
    A(f"s_lshl_b32 s10, s3, 8"); A("s_add_u32 s9, s9, s10"); A(f"s_sub_u32 s10, {4096*896}, s9")
    srd(40, 24, "s9", "s10")
    A(f"v_lshrrev_b32 v{T+8}, 4, v1"); A(f"v_mul_u32_u24 v{T+8}, 896, v{T+8}"); A(f"v_and_b32 v{T+9}, 15, v1")
    A(f"v_lshl_add_u32 v{T+8}, v{T+9}, 4, v{T+8}")
    A("s_cmp_eq_u32 s3, 3"); A("s_cselect_b32 s60, 0x00ff00ff, -1"); A("s_mov_b32 s61, s60")
    A("s_mov_b64 exec, s[60:61]")
    for t in range(16 if not skipw else 0):
        A(f"s_mov_b32 s48, {t*3584}")
        tr()
        A(f"buffer_load_dwordx4 v[{WO+4*t}:{WO+4*t+3}], v{T+8}, s[40:43], s48 offen {opol}")
    A("s_mov_b64 exec, -1")
    if TR is None:
        A("s_waitcnt lgkmcnt(0)")
        if not nob1: A("s_barrier")
    stamp(7, True)
    A("s_or_b32 s9, s3, s4"); A("s_or_b32 s9, s9, s5"); A("s_cmp_eq_u32 s9, 0"); A("s_cbranch_scc0 L_nobump")
    A("s_mov_b64 exec, 1")
    A(f"buffer_store_dword v{TG}, v2, s[12:15], s50 offen sc1")
    A("s_mov_b64 exec, -1")
    A("L_nobump:")
    srd(40, 36, None, 256)
    A(f"v_and_b32 v{T+1}, 3, v1"); A(f"v_lshlrev_b32 v{T+1}, 6, v{T+1}"); A(f"s_mov_b32 s54, {SPIN}")
    A("L_pollz:")
    A(f"buffer_load_dword v{T}, v{T+1}, s[40:43], 0 offen sc1")
    A("s_waitcnt vmcnt(0)")
    A(f"v_cmp_eq_u32 vcc, 1, v{T}")
    A("s_cmp_eq_u64 vcc, -1"); A("s_cbranch_scc1 L_gotz")
    spin_tail("L_pollz", 8)
    A("L_gotz:")
    A(f"v_mov_b32 v{T+1}, {L_CNT}"); A(f"s_mov_b32 s54, {SPIN*8}")
    A("L_pollk:")
    A(f"ds_read_b32 v{T}, v{T+1} offset:4")
    A("s_waitcnt lgkmcnt(0)")
    A(f"v_readfirstlane_b32 s10, v{T}")
    A("s_cmp_eq_u32 s10, 4"); A("s_cbranch_scc1 L_gotk")
    spin_tail("L_pollk", 2)
    A("L_gotk:")
    stamp(3)
    A("s_lshl_b32 s9, s7, 13"); A("s_lshl_b32 s10, s3, 11"); A("s_add_u32 s9, s9, s10"); A(f"s_add_u32 s9, s9, {WS_SX}")
    A(f"v_lshlrev_b32 v{T+1}, 4, v1"); A(f"s_mov_b32 s54, {SPIN}")
    SW = T + 8
    A("L_polls:")
    A(f"buffer_load_dwordx4 v[{SW}:{SW+3}], v{T+1}, s[12:15], s9 offen sc1")
    A(f"buffer_load_dwordx4 v[{SW+4}:{SW+7}], v{T+1}, s[12:15], s9 offen offset:1024 sc1")
    A("s_waitcnt vmcnt(0)")
    if xs:
        for i in range(4): A(f"v_pk_max_u16 v{T+2+i}, v{SW+i}, v{SW+4+i}")
        A(f"v_pk_max_u16 v{T+2}, v{T+2}, v{T+3}"); A(f"v_pk_max_u16 v{T+4}, v{T+4}, v{T+5}"); A(f"v_pk_max_u16 v{T}, v{T+2}, v{T+4}")
        A(f"v_lshlrev_b32 v{T+2}, 16, v{T}"); A(f"v_max_u32 v{T}, v{T}, v{T+2}")
        A(f"v_cmp_le_u32 vcc, 0xffff0000, v{T}")
    else:
        A(f"v_max_u32 v{T}, v{SW}, v{SW+1}")
        A(f"v_max3_u32 v{T}, v{T}, v{SW+2}, v{SW+3}"); A(f"v_max3_u32 v{T}, v{T}, v{SW+4}, v{SW+5}"); A(f"v_max3_u32 v{T}, v{T}, v{SW+6}, v{SW+7}")
        A(f"v_cmp_eq_u32 vcc, -1, v{T}")
    A("s_cmp_eq_u64 vcc, 0"); A("s_cbranch_scc1 L_gots")
    spin_tail("L_polls", ssl)
    A("L_gots:")
    stamp(4)
    for i in range(8):
        A(f"v_lshlrev_b32 v{AV+i}, 16, v{SW+i}"); A(f"v_and_b32 v{AV+8+i}, 0xffff0000, v{SW+i}")
    A(f"v_max_f32 v{T}, v{AV}, v{AV+1}")
    for i in range(2, 16, 2): A(f"v_max3_f32 v{T}, v{T}, v{AV+i}, v{AV+i+1}")
    wave_sum(T, 56, "max")
    CE = 1.4426950408889634 / 16
    A(f"s_mov_b32 s55, {CE:.10e}".replace(f"{CE:.10e}", hex(f2u(CE))))
    for i in range(16): A(f"v_sub_f32 v{AV+i}, v{AV+i}, v{T}")
    for i in range(16): A(f"v_mul_f32 v{AV+i}, s55, v{AV+i}")
    for i in range(16): A(f"v_exp_f32 v{AV+i}, v{AV+i}")
    A(f"v_add_f32 v{T+1}, v{AV}, v{AV+1}"); A(f"v_add_f32 v{T+2}, v{AV+2}, v{AV+3}")
    for i in range(4, 16): A(f"v_add_f32 v{T+1+(i&1)}, v{T+1+(i&1)}, v{AV+i}")
    A(f"v_add_f32 v{T+1}, v{T+1}, v{T+2}")
    wave_sum(T + 1, 56)
    A("s_lshl_b32 s9, s3, 3"); A(f"v_mov_b32 v{T+2}, s9"); A("s_mov_b64 exec, 1")
    A(f"ds_write_b64 v{T+2}, v[{T}:{T+1}] offset:{L_CNT+16}")
    A(f"v_mov_b32 v{T+2}, {L_CNT}"); A(f"v_mov_b32 v{T+3}, 1")
    A("s_waitcnt lgkmcnt(0)")
    A(f"ds_add_u32 v{T+2}, v{T+3} offset:8")
    A("s_mov_b64 exec, -1")
    A(f"v_mov_b32 v{T+2}, {L_CNT}"); A(f"s_mov_b32 s54, {SPIN*8}")
    A("L_pollm:")
    A(f"ds_read_b32 v{T+3}, v{T+2} offset:8")
    A("s_waitcnt lgkmcnt(0)")
    A(f"v_readfirstlane_b32 s10, v{T+3}")
    A("s_cmp_eq_u32 s10, 4"); A("s_cbranch_scc1 L_gotm")
    spin_tail("L_pollm", 1)
    A("L_gotm:")
    A(f"ds_read_b128 v[{SW}:{SW+3}], v{T+2} offset:16"); A(f"ds_read_b128 v[{SW+4}:{SW+7}], v{T+2} offset:32")
    A("s_waitcnt lgkmcnt(0)")
    A(f"v_max_f32 v{T+3}, v{SW}, v{SW+2}"); A(f"v_max3_f32 v{T+3}, v{T+3}, v{SW+4}, v{SW+6}")
    for i in range(4): A(f"v_sub_f32 v{SW+2*i}, v{SW+2*i}, v{T+3}")
    A(f"v_sub_f32 v{T}, v{T}, v{T+3}")
    for i in range(4): A(f"v_mul_f32 v{SW+2*i}, s55, v{SW+2*i}")
    A(f"v_mul_f32 v{T}, s55, v{T}")
    for i in range(4): A(f"v_exp_f32 v{SW+2*i}, v{SW+2*i}")
    A(f"v_exp_f32 v{T}, v{T}")
    A(f"v_mul_f32 v{T+1}, v{SW}, v{SW+1}")
    for i in range(1, 4): A(f"v_fmac_f32 v{T+1}, v{SW+2*i}, v{SW+2*i+1}")
    A(f"v_rcp_f32 v{T+1}, v{T+1}")
    A(f"v_mul_f32 v{T}, v{T}, v{T+1}")
    A(f"v_bfe_u32 v{T+2}, v1, 4, 1"); A(f"v_lshlrev_b32 v{T+2}, 11, v{T+2}")
    A(f"v_and_b32 v{T+3}, 1, v1"); A(f"v_lshl_add_u32 v{T+2}, v{T+3}, 9, v{T+2}")
    A(f"v_bfe_u32 v{T+3}, v1, 1, 3"); A(f"v_lshl_add_u32 v{T+2}, v{T+3}, 4, v{T+2}")
    A(f"v_lshrrev_b32 v{T+3}, 5, v1"); A(f"v_lshl_add_u32 v{T+2}, v{T+3}, 2, v{T+2}")
    A("s_lshl_b32 s9, s3, 12"); A(f"v_add_u32 v{T+2}, s9, v{T+2}")
    for i in range(16): A(f"v_mul_f32 v{AV+i}, v{AV+i}, v{T}")
    for i in range(16): A(f"v_cvt_pk_bf16_f32 v{AV+i}, v{AV+i}, v{AV+i}")
    for i in range(16):
        lohi = i >> 3; u = (i >> 2) & 1; e = i & 3
        A(f"ds_write_b32 v{T+2}, v{AV+i} offset:{L_P + e*128 + lohi*1024 + u*8}")
    A("s_waitcnt lgkmcnt(0)")
    if not nob2: A("s_barrier")
    stamp(5)
    A(f"v_mov_b32 v{T+1}, {L_CNT}")
    A("s_cmp_eq_u32 s3, 0"); A("s_cbranch_scc0 L_waitrole")
    srd(40, 36, None, 256)
    A("s_mov_b64 exec, 1"); A(f"v_mov_b32 v{T}, 1")
    A(f"buffer_atomic_add v{T}, v2, s[40:43], 0 offen offset:{DBG_TICKET} sc0 sc1")
    A("s_waitcnt vmcnt(0)")
    A(f"v_add_u32 v{T}, 1, v{T}")
    A(f"ds_write_b32 v{T+1}, v{T} offset:12")
    A("s_mov_b64 exec, -1")
    A("L_waitrole:")
    A(f"s_mov_b32 s54, {SPIN*8}")
    A("L_pollr:")
    A(f"ds_read_b32 v{T}, v{T+1} offset:12")
    A("s_waitcnt lgkmcnt(0)")
    A(f"v_readfirstlane_b32 s63, v{T}")
    A("s_cmp_lg_u32 s63, 0"); A("s_cbranch_scc1 L_gotr")
    spin_tail("L_pollr", 2)
    A("L_gotr:")
    A("s_sub_u32 s63, s63, 1")
    A(f"s_cmp_lt_u32 s63, {NROLE}"); A("s_cbranch_scc0 L_norole")
    A("s_mul_i32 s9, s3, 896"); srd(40, 16, "s9", 896)
    A(f"v_bfe_u32 v{T}, v1, 2, 2"); A(f"v_lshlrev_b32 v{T}, 1, v{T}"); A(f"v_bfe_u32 v{T+1}, v1, 4, 1"); A(f"v_add_u32 v{T}, v{T}, v{T+1}")
    A(f"v_lshrrev_b32 v{T+1}, 5, v1"); A(f"v_and_b32 v{T+2}, 3, v1"); A(f"v_lshl_add_u32 v{T+1}, v{T+1}, 2, v{T+2}")
    A(f"v_lshlrev_b32 v{T+2}, 6, v{T+1}"); A(f"v_lshl_add_u32 v{T+2}, v{T}, 1, v{T+2}")
    for u in range(2):
        for e in range(4): A(f"buffer_load_ushort v{X+4*u+e}, v{T+2}, s[40:43], 0 offen offset:{u*512+e*16}")
    A(f"v_lshlrev_b32 v78, 6, v{T+1}"); A(f"v_lshl_add_u32 v78, v{T}, 3, v78"); A("s_mul_i32 s9, s3, 1040"); A("v_add_u32 v78, s9, v78")
    A("s_lshl_b32 s9, s63, 7"); A(f"s_mul_i32 s10, s3, {8*3584}"); A("s_add_u32 s9, s9, s10"); A(f"s_sub_u32 s10, {448*3584}, s9")
    srd(40, 28, "s9", "s10"); srd(44, 30, "s9", "s10")
    A(f"v_mul_u32_u24 v{T+8}, 3584, v3"); A(f"v_lshl_add_u32 v{T+8}, v4, 4, v{T+8}")
    for dst, sr in ((WQ, 40), (W3S, 44)):
        for t in range(0 if skipf else 14):
            A(f"s_mov_b32 s48, {t*32*3584}")
            A(f"buffer_load_dwordx4 v[{dst+4*t}:{dst+4*t+3}], v{T+8}, s[{sr}:{sr+3}], s48 offen {fpol}")
    A(f"v_bfe_u32 v{T}, v1, 4, 1"); A(f"v_lshl_add_u32 v{T}, v{T}, 2, v4"); A(f"v_add_u32 v{T}, s3, v{T}")
    A("s_lshl_b32 s9, s3, 11"); A(f"s_add_u32 s9, s9, {L_W}")
    A(f"v_lshlrev_b32 v{T+1}, 8, v3"); A(f"v_add_u32 v{T+1}, s9, v{T+1}")
    A(f"v_lshl_add_u32 v{T+2}, v{T}, 4, v{T+1}"); A(f"v_add_u32 v{T+3}, 0x10000, v{T+2}")
    A(f"v_xor_b32 v{T+4}, 0x80, v{T+2}"); A(f"v_xor_b32 v{T+5}, 0x80, v{T+3}")
    A(f"s_mul_i32 s9, s63, {64*896}"); A(f"s_mul_i32 s10, s3, {16*896}"); A("s_add_u32 s9, s9, s10")
    srd(40, 32, "s9", 16*896)
    A(f"v_lshlrev_b32 v{T+8}, 4, v1")
    for m, src in ((0, WQ), (1, W3S)):
        for t in range(14):
            A(f"s_waitcnt vmcnt({27-14*m-t})")
            A(f"ds_write_b128 v{T+2+2*m+(t>>3)}, v[{src+4*t}:{src+4*t+3}] offset:{(t&7)*8192}")
    A("s_waitcnt lgkmcnt(0)")
    A(f"v_mov_b32 v{T}, {L_CNT}"); A(f"v_mov_b32 v{T+1}, 1"); A("s_mov_b64 exec, 1")
    A(f"ds_add_u32 v{T}, v{T+1} offset:48"); A("s_mov_b64 exec, -1")
    w2reg = lambda i: (W3S + 4*i) if i < 14 else (AV + 4*(i-14))
    A("s_mov_b32 exec_hi, 0x00ffffff")
    for i in range(0 if skipf else 16):
        A(f"s_mov_b32 s48, {(i>>2)*3584}")
        A(f"buffer_load_dwordx4 v[{w2reg(i)}:{w2reg(i)+3}], v{T+8}, s[40:43], s48 offen offset:{(i&3)*896} {fpol}")
    A("s_mov_b64 exec, -1")
    A(f"s_mov_b32 s54, {SPIN*8}")
    A("L_pollf:")
    A(f"ds_read_b32 v{T+1}, v{T} offset:48")
    A("s_waitcnt lgkmcnt(0)")
    A(f"v_readfirstlane_b32 s10, v{T+1}")
    A("s_cmp_eq_u32 s10, 4"); A("s_cbranch_scc1 L_gotf")
    spin_tail("L_pollf", 2)
    A("L_gotf:")
    tr_w13()
    for i in range(8): A(f"v_lshlrev_b32 v{X+i}, 16, v{X+i}")
    A(f"s_mul_i32 s9, s3, {16*928}"); A(f"s_add_u32 s9, s9, {L_W}")
    A(f"v_lshlrev_b32 v79, 4, v1"); A(f"v_add_u32 v79, s9, v79")
    A("L_norole:")
    A(f"v_and_b32 v{T+1}, 15, v1"); A(f"v_lshrrev_b32 v{T+2}, 4, v1")
    A(f"v_lshlrev_b32 v5, 4, v{T+1}"); A(f"v_lshl_add_u32 v5, v{T+2}, 2, v5")
    A("v_lshlrev_b32 v6, 2, v1")
    A("v_lshlrev_b32 v7, 7, v1")
    A(f"v_mov_b32 v{T+2}, 1")
    A("s_lshl_b32 s50, s5, 12"); A(f"s_add_u32 s50, s50, {WS_YA}")
    A("s_lshl_b32 s9, s3, 9"); A("s_add_u32 s51, s50, s9")
    A("s_waitcnt vmcnt(0) lgkmcnt(0)")
    A("s_barrier")
    stamp(6)
    if dbl == 2: A("s_memrealtime s[80:81]")
    acc_sum(T + 4, 5)
    A(f"v_cvt_pk_bf16_f32 v{T}, v{T+4}, v{T+4}")
    gemv_n(WO, 16, T)
    A("s_mov_b64 exec, s[60:61]")
    if not skipy & 1:
        A(f"buffer_atomic_add_f32 v{DD}, v6, s[12:15], s51 offen sc1")
        A(f"buffer_atomic_add_f32 v{DD+1}, v6, s[12:15], s51 offen offset:256 sc1")
    A(f"s_cmp_lt_u32 s63, {NROLE}"); A("s_cbranch_scc0 L_cnt")
    A("s_barrier")
    A("s_mov_b32 exec_lo, -1"); A("s_mov_b32 exec_hi, 0x00ffffff")
    for i in range(16): A(f"ds_write_b128 v79, v[{w2reg(i)}:{w2reg(i)+3}] offset:{i*928}")
    A("L_cnt:")
    A(f"s_mov_b64 exec, {(1<<R)-1}")
    A("s_waitcnt vmcnt(0)")
    if not skipy & 2: A(f"buffer_atomic_add v{T+2}, v7, s[12:15], s50 offen offset:2048 sc1")
    A("s_mov_b64 exec, -1")
    A("s_cbranch_scc0 L_done")
    A("L_ffn:")
    H = T + 16
    A_HN, A_ACTW, A_ACTR, A_ST, A_L16, A_H, A_OUT, A_W2 = range(AD, AD + 8)
    A(f"v_lshrrev_b32 v{T+2}, 4, v1"); A(f"v_bfe_u32 v{T+3}, v1, 2, 2"); A(f"v_and_b32 v{T+4}, 3, v1")
    A(f"v_mul_u32_u24 v{A_HN}, 1040, v{T+4}"); A(f"v_lshl_add_u32 v{A_HN}, v{T+3}, 6, v{A_HN}"); A(f"v_lshl_add_u32 v{A_HN}, v{T+2}, 4, v{A_HN}")
    A(f"v_mul_u32_u24 v{A_ACTW}, 144, v{T+4}"); A(f"v_lshl_add_u32 v{A_ACTR}, v{T+2}, 4, v{A_ACTW}")
    A(f"v_and_b32 v{T+5}, 1, v{T+2}"); A(f"v_lshl_add_u32 v{A_ACTW}, v{T+5}, 3, v{A_ACTW}")
    A(f"v_lshrrev_b32 v{T+5}, 5, v1"); A(f"v_lshl_add_u32 v{A_ACTW}, v{T+5}, 2, v{A_ACTW}")
    A("s_lshl_b32 s9, s62, 4"); A(f"v_add_u32 v{A_ACTW}, s9, v{A_ACTW}")
    A(f"v_lshlrev_b32 v{A_ST}, 12, v3"); A(f"v_lshl_add_u32 v{A_ST}, v4, 4, v{A_ST}")
    A(f"v_lshlrev_b32 v{A_L16}, 4, v1")
    A("s_lshl_b32 s68, s62, 15"); A("s_lshl_b32 s9, s63, 7"); A("s_add_u32 s68, s68, s9"); A(f"s_add_u32 s68, s68, {WS_ZX}")
    A(f"v_lshl_add_u32 v{A_W2}, v{T+2}, 3, v{T+3}"); A(f"v_mul_u32_u24 v{A_W2}, 928, v{A_W2}"); A(f"v_lshl_add_u32 v{A_W2}, v{T+4}, 3, v{A_W2}")
    A("s_min_u32 s9, s62, 6"); A("s_lshl_b32 s9, s9, 7"); A(f"s_add_u32 s9, s9, {L_W}"); A(f"v_add_u32 v{A_W2}, s9, v{A_W2}")
    A("s_lshl_b32 s9, s63, 1"); A("s_and_b32 s10, s62, 1"); A("s_add_u32 s9, s9, s10")
    A("s_lshl_b32 s69, s9, 12"); A(f"s_add_u32 s69, s69, {WS_ZX}")
    A("s_lshr_b32 s64, s9, 3"); A("s_lshl_b32 s64, s64, 6"); A("s_lshl_b32 s10, s10, 5"); A("s_add_u32 s64, s64, s10")
    A("s_bfe_u32 s10, s9, 0x20001"); A("s_lshl_b32 s10, s10, 2"); A("s_add_u32 s64, s64, s10")
    A(f"v_and_b32 v{T+5}, 4, v1"); A(f"v_lshlrev_b32 v{T+5}, 2, v{T+5}"); A(f"v_add_u32 v{T+5}, s64, v{T+5}")
    A(f"v_mul_u32_u24 v{A_OUT}, 896, v{T+4}"); A(f"v_lshl_add_u32 v{A_OUT}, v{T+5}, 1, v{A_OUT}")
    A(f"v_lshrrev_b32 v{A_H}, 7, v{T+5}"); A(f"v_lshlrev_b32 v{A_H}, 9, v{A_H}"); A(f"v_lshl_add_u32 v{A_H}, v{T+4}, 11, v{A_H}")
    A(f"v_bfe_u32 v{T+6}, v{T+5}, 3, 4"); A(f"v_lshl_add_u32 v{A_H}, v{T+6}, 2, v{A_H}")
    A(f"v_and_b32 v{T+6}, 4, v{T+5}"); A(f"v_lshl_add_u32 v{A_H}, v{T+6}, 5, v{A_H}")
    srd(44, 34, None, 3584)
    for q in range(1, 4):
        A(f"s_mov_b32 s{70+2*q}, {0x000f000f << (4*q):#x}"); A(f"s_mov_b32 s{71+2*q}, {0x000f000f << (4*q):#x}")
    A("s_waitcnt lgkmcnt(0)")
    A("s_barrier")
    for q in range(4):
        for sk in range(2):
            for h in range(2):
                r = W2F + 8*q + 4*sk + 2*h
                A(f"ds_read_b64_tr_b16 v[{r}:{r+1}], v{A_W2} offset:{(32*sk+4*h)*928 + 32*q}")
    for k in range(16): A(f"v_mov_b32 v{DQ+k}, 0")
    A("s_cmp_lt_u32 s62, 4"); A("s_cbranch_scc1 L_f1wait")
    A("s_mov_b32 s52, -1"); A("s_mov_b32 s53, 0x33333333")
    A("s_lshl_b32 s50, s3, 12"); A(f"s_add_u32 s50, s50, {WS_YA}")
    A(f"s_and_b32 s9, s63, {R-1}"); A("s_lshl_b32 s9, s9, 7"); A("s_add_u32 s9, s9, s50"); A(f"s_mov_b32 s54, {SPIN if not skipy & 2 else 1}")
    A("s_lshl_b32 s10, s3, 11"); A(f"v_add_u32 v79, s10, v{A_L16}")
    ldy = lambda k: A(f"buffer_load_dword v{T+k}, v2, s[12:15], s9 offen offset:2048 sc1")
    if pp:
        ldy(0); A("s_sleep 1"); ldy(1); A("s_sleep 1")
        A("L_polly:")
        for k in range(3):
            ldy((k + 2) % 3)
            A("s_waitcnt vmcnt(2)")
            A(f"v_readfirstlane_b32 s10, v{T+k}")
            A("s_cmp_eq_u32 s10, 256"); A("s_cbranch_scc1 L_goty")
        A("s_sub_u32 s54, s54, 1"); A("s_cmp_lg_u32 s54, 0"); A("s_cbranch_scc1 L_polly")
    else:
        A("L_polly:")
        ldy(0)
        A("s_waitcnt vmcnt(0)")
        A(f"v_readfirstlane_b32 s10, v{T}")
        A("s_cmp_eq_u32 s10, 256"); A("s_cbranch_scc1 L_goty")
        spin_tail("L_polly", 1)
    A("L_goty:")
    if fst: stamp(5)
    A(f"buffer_load_dwordx4 v[{H}:{H+3}], v{A_L16}, s[12:15], s50 offen sc1")
    A(f"buffer_load_dwordx4 v[{H+4}:{H+7}], v{A_L16}, s[12:15], s50 offen offset:1024 sc1")
    A("s_waitcnt vmcnt(0)")
    stamp(7)
    for i in range(8): rbf(H + i)
    for i in range(8): A(f"v_add_f32 v{H+i}, v{H+i}, v{X+i}")
    for i in range(8): rbf(H + i)
    A(f"ds_write_b128 v79, v[{H}:{H+3}] offset:{L_H}")
    A(f"ds_write_b128 v79, v[{H+4}:{H+7}] offset:{L_H+1024}")
    layernorm(H, L_HN, True)
    A("L_f1wait:")
    A("s_waitcnt lgkmcnt(0)")
    if fst: stamp(2)
    A("s_barrier")
    if fst: stamp(3)
    for i in range(4): A(f"ds_read_b128 v[{AV+4*i}:{AV+4*i+3}], v{A_HN} offset:{L_HN+256*i}")
    for r in range(4): A(f"ds_read_b32 v{H+r}, v{A_H} offset:{L_H+64*(r>>1)+256*(r&1)}")
    for t in range(14):
        if t % 4 == 0: A(f"s_waitcnt lgkmcnt({7-t//4})")
        d = DQ + 4*(t&3); b = AV + 4*(t>>2)
        A(f"v_mfma_f32_16x16x32_bf16 v[{d}:{d+3}], v[{WQ+4*t}:{WQ+4*t+3}], v[{b}:{b+3}], v[{d}:{d+3}]")
    for r in range(4): A(f"v_add_f32_dpp v{DQ+8+r}, v{DQ+12+r}, v{DQ+8+r} row_shl:4 row_mask:0xf bank_mask:0xf")
    for r in range(4): A(f"v_add_f32_dpp v{DQ+r}, v{DQ+4+r}, v{DQ+r} row_shl:4 row_mask:0xf bank_mask:0xf")
    for r in range(4): A(f"v_add_f32_dpp v{T+r}, v{DQ+8+r}, v{DQ+r} row_shl:8 row_mask:0xf bank_mask:0xf")
    for r in range(4): rbf(T + r)
    A(f"v_permlane32_swap_b32 v{T}, v{T+2}"); A(f"v_permlane32_swap_b32 v{T+1}, v{T+3}")
    for i in range(2): A(f"v_mul_f32 v{T+4+i}, {hex(f2u(-1.4426950408889634))}, v{T+i}")
    for i in range(2): A(f"v_exp_f32 v{T+4+i}, v{T+4+i}")
    for i in range(2): A(f"v_add_f32 v{T+4+i}, 1.0, v{T+4+i}")
    for i in range(2): A(f"v_rcp_f32 v{T+4+i}, v{T+4+i}")
    for i in range(2): A(f"v_mul_f32 v{T+4+i}, v{T+4+i}, v{T+i}")
    for i in range(2): rbf(T + 4 + i)
    for i in range(2): A(f"v_mul_f32 v{T+4+i}, v{T+4+i}, v{T+2+i}")
    A(f"v_cvt_pk_bf16_f32 v{T}, v{T+4}, v{T+5}")
    A("s_mov_b32 exec_lo, 0x000f000f"); A("s_mov_b32 exec_hi, 0x000f000f")
    A(f"ds_write_b32 v{A_ACTW}, v{T} offset:{L_ACT}")
    A("s_mov_b64 exec, -1")
    RD = 64
    NS = 3 if pp else 1
    for j in range(NS):
        for k in range(4): A(f"v_mov_b32 v{RD+16*j+12+k}, 0")
    A(f"s_mov_b32 s54, {SPIN}")
    A("s_waitcnt lgkmcnt(0)")
    A("s_barrier")
    if fst: stamp(4)
    A("s_cmp_eq_u32 s62, 7"); A("s_cbranch_scc1 L_pollo")
    for sk in range(2): A(f"ds_read_b128 v[{AV+4*sk}:{AV+4*sk+3}], v{A_ACTR} offset:{L_ACT+64*sk}")
    for sk in range(2):
        A(f"s_waitcnt lgkmcnt({1-sk})")
        for q in range(4):
            d = DQ + 4*q; a = W2F + 8*q + 4*sk; c = f"v[{d}:{d+3}]" if sk else "0"
            A(f"v_mfma_f32_16x16x32_bf16 v[{d}:{d+3}], v[{a}:{a+3}], v[{AV+4*sk}:{AV+4*sk+3}], {c}")
    for q in range(1, 4):
        for r in range(4): A(f"v_cndmask_b32 v{DQ+r}, v{DQ+r}, v{DQ+4*q+r}, s[{70+2*q}:{71+2*q}]")
    for k in range(4): A(f"v_min_u32 v{DQ+k}, -2, v{DQ+k}")
    A(f"buffer_store_dwordx4 v[{DQ}:{DQ+3}], v{A_ST}, s[12:15], s68 offen sc1")
    if fst: stamp(0)
    A("s_cmp_eq_u32 s62, 6"); A("s_cbranch_scc0 L_done")
    A("L_pollo:")
    def ldo(j):
        r = RD + 16 * j
        for i in range(3): A(f"buffer_load_dwordx4 v[{r+4*i}:{r+4*i+3}], v{A_L16}, s[12:15], s69 offen offset:{1024*i} sc1")
        A("s_mov_b32 exec_hi, 0")
        A(f"buffer_load_dwordx4 v[{r+12}:{r+15}], v{A_L16}, s[12:15], s69 offen offset:3072 sc1")
        A("s_mov_b32 exec_hi, -1")
    def chk(j):
        r = RD + 16 * j
        A(f"v_max_u32 v{T}, v{r}, v{r+1}")
        for i in range(2, 16, 2): A(f"v_max3_u32 v{T}, v{T}, v{r+i}, v{r+i+1}")
        A(f"v_cmp_eq_u32 vcc, -1, v{T}")
        A("s_cmp_eq_u64 vcc, 0"); A(f"s_cbranch_scc1 L_goto{j}")
    for j in range(NS - 1): ldo(j); A("s_sleep 2")
    A("L_pollo1:")
    for j in range(NS):
        ldo((j + NS - 1) % NS)
        A(f"s_waitcnt vmcnt({4*(NS-1)})")
        chk(j)
    A("s_sub_u32 s54, s54, 1"); A("s_cmp_lg_u32 s54, 0"); A("s_cbranch_scc1 L_pollo1")
    RS = AV
    for j in range(NS):
        r = RD + 16 * j
        A(f"L_goto{j}:")
        for k in range(8): A(f"v_add_f32 v{RS+k}, v{r+k}, v{r+8+k}")
        if j < NS - 1: A("s_branch L_goto")
    A("L_goto:")
    if fst: stamp(6)
    RD = RS
    for k in range(4): A(f"v_add_f32 v{RD+k}, v{RD+k}, v{RD+4+k}")
    for k in range(4): A(f"v_add_f32_dpp v{RD+k}, v{RD+k}, v{RD+k} row_ror:8 row_mask:0xf bank_mask:0xf")
    for k in range(4): A(f"v_mov_b32 v{RD+4+k}, v{RD+k}")
    for k in range(4): A(f"v_permlane16_swap_b32 v{RD+k}, v{RD+4+k}")
    for k in range(4): A(f"v_add_f32 v{RD+k}, v{RD+k}, v{RD+4+k}")
    for k in range(4): A(f"v_mov_b32 v{RD+4+k}, v{RD+k}")
    for k in range(4): A(f"v_permlane32_swap_b32 v{RD+k}, v{RD+4+k}")
    for k in range(4): A(f"v_add_f32 v{RD+k}, v{RD+k}, v{RD+4+k}")
    for k in range(4): rbf(RD + k)
    for k in range(4): A(f"v_add_f32 v{RD+k}, v{RD+k}, v{H+k}")
    A(f"v_cvt_pk_bf16_f32 v{T+2}, v{RD}, v{RD+1}"); A(f"v_cvt_pk_bf16_f32 v{T+3}, v{RD+2}, v{RD+3}")
    A("s_mov_b64 exec, 0xff")
    A(f"buffer_store_dwordx2 v[{T+2}:{T+3}], v{A_OUT}, s[44:47], 0 offen")
    A("s_mov_b64 exec, -1")
    A("L_done:")
    if dbl:
        A("s_waitcnt vmcnt(0)")
        A("s_cmp_lt_u32 s62, 4"); A("s_cbranch_scc1 L_exit")
        if dbl == 1: A("s_memrealtime s[80:81]")
        A("s_waitcnt lgkmcnt(0)")
        A("s_sub_u32 s82, s80, s82"); A("s_add_u32 s82, s82, s80")
        if dbl == 2: A("s_add_u32 s82, s82, 1000")
        A("L_dbl:")
        A("s_memrealtime s[80:81]"); A("s_waitcnt lgkmcnt(0)")
        A("s_sub_u32 s80, s80, s82"); A("s_cmp_lt_i32 s80, 0"); A("s_cbranch_scc1 L_dbl")
    if stamps:
        A("s_waitcnt vmcnt(0)")
        A("s_mov_b32 s3, s62")
        A("s_cmp_lt_u32 s62, 4"); A("s_cbranch_scc1 L_st1")
        A("s_memrealtime s[86:87]")
        A("L_st1:")
    write_stamps(True)
    A("s_endpgm")

    body = A.finish()
    out = HDR + f"; @launch grid=(256,1,1) block=(512,1,1) lds={LDS_SIZE}\n"
    out += f'.amdgcn_target "amdgcn-amd-amdhsa--gfx950"\n.text\n.globl {NAME}\n.p2align 8\n.type {NAME},@function\n'
    out += body
    out += f'''.section .rodata,"a"
.p2align 6
.amdhsa_kernel {NAME}
  .amdhsa_next_free_vgpr 256
  .amdhsa_next_free_sgpr 102
  .amdhsa_accum_offset 256
  .amdhsa_group_segment_fixed_size 0
  .amdhsa_kernarg_size 96
  .amdhsa_user_sgpr_count 2
  .amdhsa_user_sgpr_kernarg_segment_ptr 1
  .amdhsa_system_sgpr_workgroup_id_x 1
.end_amdhsa_kernel
'''
    return out

import struct
def f2u(f): return struct.unpack("<I", struct.pack("<f", f))[0]

if __name__ == "__main__":
    kw = eval("dict(" + (sys.argv[2] if len(sys.argv) > 2 else "") + ")")
    open(sys.argv[1], "w").write(gen(**kw))
```

```python
import sys, os
sys.path.insert(0, os.path.dirname(os.path.abspath(__file__)))
from asmlib import Asm

NAME = "sequential_preLN__mha_block_cached__glu_gated_swiglu__decode_kernel"
HDR = open(os.path.join(os.path.dirname(os.path.abspath(__file__)), "header.txt")).read()

WS_EP, WS_QX, WS_SX, WS_YA, WS_ZX, WS_TS = 0x0, 0x180000, 0x40000, 0x100000, 0x200000, 0x300000
WS_SIZE = 0x400000
L_P, L_Q, L_CNT, L_XN, L_ACC, L_H, L_HN, L_ACT, L_W = 0x0, 0x4000, 0x4200, 0x4800, 0x5000, 0x5800, 0x7800, 0x9000, 0xa000
LDS_SIZE = L_W + 448 * 256
NROLE = 28
DBG_TICKET = 16
SPIN = 200000

def gen(NG=13, D=8, stamps=False, wpol="", perload=True, dbg=False, skipw=0, nob1=False, nob2=False, TR=None, D0=None, R=4, fst=False, skipf=False, fpol='', opol='', qpol='', skipy=0, swap=0, touch=0, early=False, rot=0, qsl=1, ssl=2, qpre=False, nofill=0, spol='sc1', kpol='nt', vpol='nt', dbl=0, pp=False, ad=None, adl=3, sd=None, sdk=0, xs=0, fb=None, pe=2, rp=1, rk=None, te=None, tw=63, ft=0):
    if dbg: stamps = True
    A = Asm()
    nstamp = [0]; svc_mode = [False]
    def stamp(i, e=False):
        if early and not e and i in (1, 2, 3, 4, 5, 6, 7) and not (svc_mode[0] and i == 2): return
        if e and not early: return
        if stamps:
            A(f"s_memrealtime s[{84+2*i}:{85+2*i}]")
    def srd(d, base, off, size):
        if off is None:
            A(f"s_mov_b32 s{d}, s{base}"); A(f"s_mov_b32 s{d+1}, s{base+1}")
        else:
            A(f"s_add_u32 s{d}, s{base}, {off}"); A(f"s_addc_u32 s{d+1}, s{base+1}, 0")
        A(f"s_mov_b32 s{d+2}, {size}"); A(f"s_mov_b32 s{d+3}, 0x20000")
    def write_stamps(svc=False):
        if not stamps: return
        if dbg:
            if not svc: return
            A("s_cmp_eq_u32 s3, 4"); A("s_cbranch_scc0 L_exit")
            A("s_waitcnt lgkmcnt(0)")
            A("s_mov_b64 exec, 1")
            srd(40, 36, None, 256)
            A("v_mov_b32 v2, 0")
            A("s_not_b32 s84, s84")
            for i in range(8): A(f"v_mov_b32 v{8+i}, s{84+2*i}")
            for i in range(8):
                if not svc and i > 5: continue
                A(f"buffer_atomic_umax v{8+i}, v2, s[40:43], 0 offen offset:{(8+i)*4 if svc else (1+i)*4} sc1")
            A("s_waitcnt vmcnt(0)")
            return
        A("s_waitcnt lgkmcnt(0)")
        A("s_mov_b64 exec, 1")
        A("s_lshl_b32 s60, s2, 3"); A("s_add_u32 s60, s60, s3"); A("s_lshl_b32 s60, s60, 6"); A(f"s_add_u32 s60, s60, {WS_TS}")
        A("v_mov_b32 v2, 0")
        for i in range(8):
            A(f"v_mov_b32 v{8+i}, s{84+2*i}")
        A("s_getreg_b32 s61, hwreg(HW_REG_XCC_ID)")
        A("v_mov_b32 v16, s61")
        A("buffer_store_dwordx4 v[8:11], v2, s[12:15], s60 offen")
        A("buffer_store_dwordx4 v[12:15], v2, s[12:15], s60 offen offset:16")
        A("buffer_store_dword v16, v2, s[12:15], s60 offen offset:32")
        A("s_waitcnt vmcnt(0)")

    A(f"{NAME}:")
    A("s_cmp_ge_u32 s2, 256")
    A("s_cbranch_scc1 L_exit")
    if stamps:
        for i in range(8): A(f"s_mov_b32 s{84+2*i}, 0")
    stamp(0)
    if dbl: A("s_memrealtime s[82:83]")
    A("s_load_dwordx16 s[16:31], s[0:1], 0")
    A("s_load_dwordx8 s[32:39], s[0:1], 64")
    A("v_lshrrev_b32 v2, 6, v0")
    A("v_and_b32 v1, 63, v0")
    A("v_lshlrev_b32 v10, 2, v1"); A("v_mov_b32 v16, 0")
    A("v_readfirstlane_b32 s3, v2")
    A(f"ds_write_b32 v10, v16 offset:{L_CNT}")
    if swap == 1:
        A("s_bfe_u32 s4, s2, 0x20001"); A("s_and_b32 s9, s2, 1")
    elif swap == 3:
        A("s_bfe_u32 s10, s2, 0x10002"); A("s_mul_i32 s10, s10, 3"); A("s_and_b32 s4, s2, 1"); A("s_xor_b32 s4, s4, s10"); A("s_bfe_u32 s9, s2, 0x10001")
    elif swap < 4:
        A("s_and_b32 s4, s2, 1"); A("s_lshr_b32 s9, s2, 1"); A("s_and_b32 s10, s9, 2"); A("s_or_b32 s4, s4, s10"); A("s_and_b32 s9, s9, 1")
    if swap == 4:
        A("s_bfe_u32 s4, s2, 0x20005"); A("s_and_b32 s9, s2, 7"); A("s_lshr_b32 s10, s2, 7"); A("s_lshl3_add_u32 s6, s10, s9")
    elif swap == 5:
        A("s_lshr_b32 s4, s2, 6"); A("s_and_b32 s9, s2, 7"); A("s_bfe_u32 s10, s2, 0x10005"); A("s_lshl1_add_u32 s6, s9, s10")
    elif swap == 6:
        A("s_bfe_u32 s4, s2, 0x10005"); A("s_and_b32 s9, s2, 1"); A("s_lshl1_add_u32 s4, s9, s4")
        A("s_bfe_u32 s9, s2, 0x20001"); A("s_lshr_b32 s10, s2, 6"); A("s_lshl2_add_u32 s6, s10, s9")
    else:
        A("s_lshr_b32 s10, s2, 5"); A("s_lshl1_add_u32 s6, s10, s9")
    A("s_bfe_u32 s5, s2, 0x20003"); A("s_lshl4_add_u32 s7, s5, s6")
    A("v_lshrrev_b32 v3, 3, v1"); A("v_and_b32 v4, 7, v1")
    A("s_lshl2_add_u32 s10, s7, s4"); A("s_lshl_b32 s10, s10, 19")
    A("v_lshlrev_b32 v6, 9, v3"); A("v_lshl_add_u32 v6, v4, 4, v6")
    A("v_lshl_add_u32 v5, v2, 12, v6")
    NK = 32 + xs
    if xs:
        A("s_sub_u32 s42, 4, s4"); A("s_lshl_b32 s42, s42, 19")
        A("s_lshl_b32 s52, s4, 14"); A("s_add_u32 s52, s52, s42"); A(f"s_sub_u32 s52, s52, {1<<19}")
    else: A(f"s_mov_b32 s42, {512<<10}")
    A("s_mov_b32 s43, 0x20000")
    A("s_cmp_ge_u32 s3, 4")
    A("s_waitcnt lgkmcnt(0)")
    stamp(1, True)
    A("s_barrier")
    A("s_cbranch_scc1 L_service")

    RING = 256 - NG * 16
    Q = RING - 16
    assert Q >= 24
    A("s_add_u32 s40, s18, s10"); A("s_addc_u32 s41, s19, 0")
    def common():
        A("s_andn2_b32 s8, s2, 24")
        A("s_mov_b32 s62, s3")
        srd(12, 38, None, WS_SIZE)
    def acc_addr(v, t):
        A(f"v_bfe_u32 v{t}, v1, 4, 1"); A(f"v_lshlrev_b32 v{t}, 4, v{t}"); A(f"v_lshl_add_u32 v{t}, v4, 5, v{t}")
        A(f"v_lshrrev_b32 v{v}, 5, v1"); A(f"v_lshl_add_u32 v{v}, v{v}, 8, v{t}")
        A("s_lshl_b32 s9, s3, 9"); A(f"v_add_u32 v{v}, s9, v{v}")
    def acc_sum(dst, addr):
        for i in range(4): A(f"ds_read2st64_b32 v[{dst+2*i}:{dst+2*i+1}], v{addr} offset0:{L_ACC//256+2*i} offset1:{L_ACC//256+2*i+1}")
        A("s_waitcnt lgkmcnt(0)")
        for i in range(4): A(f"v_add_f32 v{dst+i}, v{dst+i}, v{dst+4+i}")
        A(f"v_add_f32 v{dst}, v{dst}, v{dst+1}"); A(f"v_add_f32 v{dst+2}, v{dst+2}, v{dst+3}"); A(f"v_add_f32 v{dst}, v{dst}, v{dst+2}")
    ops = []
    def wait_for(tag):
        idx = max(i for i, t in enumerate(ops) if t == tag)
        n = len(ops) - 1 - idx
        A(f"s_waitcnt vmcnt({min(n,63)})")
    landed = set()
    def throttle(n):
        if len(ops) > n:
            A(f"s_waitcnt vmcnt({n})")
            for t in ops[:len(ops) - n]: landed.add(t)
            for t in ops[len(ops) - n:]: landed.discard(t)
    cur = [None]; nlab = [0]
    def throttle_ad():
        _, _, _, d1, d2, d3 = cur[0]
        throttle(d3 - 1)
        lab = f"L_ad{nlab[0]}"; nlab[0] += 1
        if d2 < d3: A(f"s_cbranch_scc1 {lab}"); A(f"s_waitcnt vmcnt({d2-1})")
        if d1 < d2: A(f"s_cbranch_vccnz {lab}"); A(f"s_waitcnt vmcnt({d1-1})")
        A(f"{lab}:")
    def setflags():
        if cur[0] is None: return
        A(f"s_cmp_ge_u32 s53, {cur[0][1]}"); A("s_cselect_b64 vcc, -1, 0"); A(f"s_cmp_ge_u32 s53, {cur[0][2]}")
    fbmark = {}
    def feedback(e):
        e0, step, t1, t2, d1, d2, d3 = fb
        FL = 3
        if e % pe == 0 and e >= e0 - 8:
            A("s_cmp_eq_u32 s55, 0"); A(f"s_cbranch_scc0 L_np{e}")
            A(f"v_mov_b32 v22, {e}"); A(f"s_mov_b64 exec, {(1<<rp)-1}")
            A("buffer_store_dword v22, v21, s[56:59], 0 offen sc1"); A("s_mov_b64 exec, -1")
            A(f"L_np{e}:")
        ld = e >= e0 and (e - e0) % step == 0 and e + FL + 2 < NK + 32
        us = e - FL in fbmark
        if ld or us:
            A("s_cmp_lt_u32 s55, 2"); A(f"s_cbranch_scc0 L_nw{e}")
            if us:
                r = 24 + ((e - FL - e0) // step) % 2
                A(f"s_waitcnt vmcnt({len(ops) - fbmark[e - FL]})")
                A(f"v_add_u32_dpp v{r}, v{r}, v{r} quad_perm:[1,0,3,2] row_mask:0xf bank_mask:0xf")
                A(f"v_add_u32_dpp v{r}, v{r}, v{r} quad_perm:[2,3,0,1] row_mask:0xf bank_mask:0xf")
                A(f"v_add_u32_dpp v{r}, v{r}, v{r} row_half_mirror row_mask:0xf bank_mask:0xf")
                A(f"v_readfirstlane_b32 s9, v{r}")
                A(f"s_cmp_ge_u32 s9, {8*(e-FL)+t1}"); A("s_cselect_b32 s10, 1, 0")
                A(f"s_cmp_ge_u32 s9, {8*(e-FL)+t2}"); A("s_cselect_b32 s10, 2, s10")
                A(f"v_mov_b32 v{r}, s10"); A(f"ds_write_b32 v26, v{r} offset:52")
            if ld:
                r = 24 + ((e - e0) // step) % 2
                A("s_mov_b64 exec, 0xff")
                A(f"buffer_load_dword v{r}, v23, s[56:59], 0 offen sc1"); fbmark[e] = len(ops)
                A("s_mov_b64 exec, -1")
            A(f"L_nw{e}:")
        if e >= e0 + FL + 1:
            A("s_waitcnt lgkmcnt(0)" if e - NG < NK else "s_waitcnt lgkmcnt(1)")
            A("v_readfirstlane_b32 s53, v20")
            cur[0] = (e, 1, 2, d1, d2, d3)
        if e >= e0 + FL: A("ds_read_b32 v20, v26 offset:52")
        setflags()
    def checkpoint(e):
        if fb: feedback(e)
        if e == te:
            A("s_mov_b64 exec, 1"); A(f"v_mov_b32 v26, {L_CNT}"); A("v_mov_b32 v20, 1")
            A("ds_add_u32 v26, v20 offset:56"); A("s_mov_b64 exec, -1")
        if rk:
            e0 = NK + NG if te is None else te + 1; e1 = e0 + rk[0]
            if e0 < e <= e1:
                if e - NG < NK: A("s_waitcnt lgkmcnt(0)")
                A("v_readfirstlane_b32 s53, v20"); A(f"s_sub_u32 s53, s53, {NROLE+1}")
                cur[0] = (e, rk[1] - NROLE, rk[2] - NROLE) + tuple(rk[3:]); setflags()
            if e0 <= e < e1: A(f"v_mov_b32 v26, {L_CNT}"); A("ds_read_b32 v20, v26 offset:12")
        for cp in sd or []:
            if cp[0] == e: cur[0] = cp; setflags()
        for i, cp in enumerate(ad or []):
            if cp[0] == e:
                A("s_mov_b64 exec, 1"); A(f"v_mov_b32 v{22+(i&1)}, 1")
                A(f"buffer_atomic_add v{22+(i&1)}, v21, s[56:59], 0 offen offset:{24+4*i} sc0 sc1")
                A("s_mov_b64 exec, -1")
                ops.append(f"tk{i}")
            if cp[0] + adl == e:
                if f"tk{i}" not in landed: wait_for(f"tk{i}")
                A(f"v_readfirstlane_b32 s53, v{22+(i&1)}")
                cur[0] = cp
                setflags()
    def issue(e):
        r = RING + (e % NG) * 16
        if rot and (e < 32 or rot & 64):
            if e == 0: A(f"s_mul_i32 s59, s2, {rot & 63}"); A("s_lshr_b32 s48, s2, 3"); A("s_add_u32 s59, s59, s48")
            A(f"s_add_u32 s48, s59, {e}"); A("s_and_b32 s48, s48, 31"); A(f"s_lshl_b32 s48, s48, {14 if e < 32 else 16}")
        elif e < xs: A("s_mov_b32 s48, s52")
        elif e < NK: A(f"s_mov_b32 s48, {(e-xs)*16384}")
        else: A(f"s_mov_b32 s48, {(e-NK)*65536}")
        if not perload: throttle(D - 4)
        for j in range(4):
            if cur[0]: throttle_ad()
            elif perload: throttle((D0 if (D0 and e < NG) else D) - 1)
            if e < NK: A(f"buffer_load_dwordx4 v[{r+4*j}:{r+4*j+3}], v5, s[40:43], s48 offen offset:{128*j} {kpol}")
            else: A(f"buffer_load_dwordx4 v[{r+4*j}:{r+4*j+3}], v{6+j}, s[44:47], s48 offen {vpol}")
            ops.append(e)
    def consume_k(c):
        if c not in landed: wait_for(c)
        r = RING + (c % NG) * 16
        for j in range(4): A(f"v_mov_b32 v{12+j}, 0")
        for k in range(4):
            for j in range(4): A(f"v_dot2c_f32_bf16 v{12+j}, v{r+4*j+k}, v{Q+4*j+k}")
        A("v_add_f32 v12, v12, v13"); A("v_add_f32 v14, v14, v15"); A("v_add_f32 v12, v12, v14")
        A("v_add_f32_dpp v12, v12, v12 quad_perm:[1,0,3,2] row_mask:0xf bank_mask:0xf")
        A("v_add_f32_dpp v12, v12, v12 quad_perm:[2,3,0,1] row_mask:0xf bank_mask:0xf")
        A("v_add_f32_dpp v12, v12, v12 row_half_mirror row_mask:0xf bank_mask:0xf")
        c -= xs
        if c < 0:
            A("v_cvt_pk_bf16_f32 v18, v12, v12"); A("v_pk_min_u16 v18, v18, s51")
            A("s_lshl_b32 s9, 0x01010101, s4"); A("s_mov_b32 exec_lo, s9"); A("s_mov_b32 exec_hi, s9")
            A("buffer_store_short v18, v10, s[12:15], s50 offen sc1")
            A("s_mov_b64 exec, -1")
            return
        dst = 16 + ((c >> 3) & 1)
        A(f"v_cndmask_b32 v{dst}, v{dst}, v12, s[{64+2*(c&7)}:{65+2*(c&7)}]")
        if c % 16 == 15:
            A("v_cvt_pk_bf16_f32 v18, v16, v17")
            A("v_pk_min_u16 v18, v18, s51" if xs else "v_min_u32 v18, -2, v18")
            if xs and c == 15:
                A("s_cmp_eq_u32 s4, 3"); A("s_cbranch_scc0 L_st15")
                A("s_mov_b32 exec_lo, 0x07070707"); A("s_mov_b32 exec_hi, 0x07070707")
                A("buffer_store_short_d16_hi v18, v10, s[12:15], s49 offen offset:2 sc1")
                A("s_mov_b32 exec_lo, 0xf8f8f8f8"); A("s_mov_b32 exec_hi, 0xf8f8f8f8")
                A("L_st15:")
            A(f"buffer_store_dword v18, v10, s[12:15], s49 offen offset:{256*(c>>4)} sc1")
            if xs and c == 15: A("s_mov_b64 exec, -1")
            ops.append("st")
    PM, PA, PP, ACC = Q, Q + 4, 12, Q + 12
    def read_p(c):
        A(f"ds_read_b128 v[{PP+4*(c&1)}:{PP+4*(c&1)+3}], v11 offset:{L_P + c*512}")
    def consume_v(c):
        e = NK + c
        A("s_waitcnt lgkmcnt(0)")
        if c + 1 < 32: read_p(c + 1)
        if e not in landed: wait_for(e)
        r = RING + (e % NG) * 16
        p = PP + 4 * (c & 1)
        def ands(j):
            for k in range(4): A(f"v_and_b32 v{PA+4*(j&1)+k}, v{p+j}, v{PM+k}")
        def mf(j):
            a = PA + 4 * (j & 1)
            A(f"v_mfma_f32_16x16x32_bf16 v[{ACC}:{ACC+3}], v[{a}:{a+3}], v[{r+4*j}:{r+4*j+3}], v[{ACC}:{ACC+3}]")
        ands(0); ands(1); mf(0); ands(2); mf(1); ands(3); mf(2); mf(3)

    first = ((D0 or D) + 3) // 4
    if xs:
        A("s_cmp_eq_u32 s4, 3"); A("s_cbranch_scc0 L_p0")
        for e in range(first): issue(4 + e)
        A("s_branch L_p1")
        del ops[:]; landed.clear()
        A("L_p0:")
    for e in range(first): issue(e)
    A("L_p1:")
    stamp(2, True)
    common()
    A("s_lshl_b32 s9, s7, 21")
    A("s_lshl_b32 s10, s4, 7"); A(f"s_sub_u32 s11, {2<<20}, s10"); A("s_add_u32 s10, s10, s9")
    srd(44, 20, "s10", "s11")
    A("v_lshl_add_u32 v6, v2, 14, v6")
    for j in range(1, 4): A(f"v_add_u32 v{6+j}, {4096*j}, v6")
    A("s_lshl_b32 s49, s7, 13"); A("s_lshl_b32 s9, s4, 11"); A("s_add_u32 s49, s49, s9")
    A("s_lshl_b32 s9, s3, 9"); A("s_add_u32 s49, s49, s9"); A(f"s_add_u32 s49, s49, {WS_SX}")
    A("v_lshlrev_b32 v11, 4, v3"); A("s_lshl_b32 s9, s3, 7"); A("v_add_u32 v11, s9, v11")
    for c in range(8):
        A(f"s_mov_b32 s{64+2*c}, {0x01010101 << c:#x}"); A(f"s_mov_b32 s{65+2*c}, {0x01010101 << c:#x}")
    A("v_mov_b32 v17, 0")
    if xs:
        A("s_mov_b32 s51, 0xfffefffe"); A("s_or_b32 s50, s49, 0x1800")
        A("s_cmp_eq_u32 s4, 3"); A(f"s_cbranch_scc1 L_p2")
    if fb:
        srd(56, 36, None, 256)
        sh = 7 if rp == 2 else 6
        A("s_and_b32 s9, s2, 7"); A("s_lshl2_add_u32 s9, s9, 32"); A("v_and_b32 v21, 3, v1"); A(f"v_lshlrev_b32 v21, {sh}, v21"); A("v_add_u32 v21, s9, v21")
        A(f"s_and_b32 s9, s5, {rp-1}"); A(f"s_lshl_b32 s9, s9, {sh}"); A("s_add_u32 s9, s9, 32")
        A("v_lshlrev_b32 v23, 2, v4"); A("v_add_u32 v23, s9, v23"); A(f"v_mov_b32 v26, {L_CNT}")
        A("v_mov_b32 v24, 0"); A("v_mov_b32 v25, 0")
        A("s_cmp_lt_u32 s2, 8"); A("s_cselect_b32 s55, 0, 1"); A("s_cmp_eq_u32 s3, 0"); A("s_cselect_b32 s55, s55, 2")
    if ad: srd(56, 36, None, 256); A("v_lshlrev_b32 v21, 6, v2")
    if sd and sdk == 0: A("s_mov_b32 s53, s4")
    if sd and sdk == 1: A("s_cmp_eq_u32 s4, 3"); A("s_cselect_b32 s53, 1, 0"); A("s_and_b32 s9, s2, 1"); A("s_add_u32 s53, s53, s9")
    stamp(3, True)
    kc = 0; vc = 0
    def b1():
        stamp(6)
        if not nob1: A("s_barrier")
        stamp(1)
        A("v_lshlrev_b32 v19, 4, v4")
        for j in range(4): A(f"ds_read_b128 v[{Q+4*j}:{Q+4*j+3}], v19 offset:{L_Q+128*j}")
        A("s_waitcnt lgkmcnt(0)")
    for e in range(first, NK + 32):
        if xs and e == 4 + first: A("L_p2:")
        if e == 3: stamp(4, True)
        if e == 4: stamp(5, True)
        if e == 6: stamp(6, True)
        if e == 10: stamp(7, True)
        if e - NG >= 0 and e - NG < NK and kc <= e - NG:
            skip = xs and kc < 4
            if skip: A("s_cmp_eq_u32 s4, 3"); A(f"s_cbranch_scc1 L_sk{kc}")
            if kc == 0: b1()
            if xs and kc == 4:
                A("s_cmp_eq_u32 s4, 3"); A("s_cbranch_scc0 L_sk4"); b1(); A("L_sk4:")
            consume_k(kc)
            if skip: A(f"L_sk{kc}:")
            kc += 1
        if e >= NK:
            while kc < NK and kc in landed:
                consume_k(kc); kc += 1
                if kc == NK:
                    stamp(2)
                    A("s_mov_b64 exec, 1"); A(f"v_mov_b32 v19, {L_CNT+4}"); A("v_mov_b32 v18, 1")
                    A("ds_add_u32 v19, v18"); A("s_mov_b64 exec, -1")
                    A("v_and_b32 v19, 1, v1"); A("v_cmp_eq_u32 vcc, 1, v19")
                    A("v_mov_b32 v18, 0xffff"); A("v_mov_b32 v19, 0xffff0000"); A("v_cndmask_b32 v18, v18, v19, vcc")
                    A("v_lshrrev_b32 v19, 1, v4")
                    for k in range(4):
                        A(f"v_cmp_eq_u32 vcc, {k}, v19"); A(f"v_cndmask_b32 v{PM+k}, 0, v18, vcc")
                    for k in range(4): A(f"v_mov_b32 v{ACC+k}, 0")
                    acc_addr(10, 18)
                    setflags()
        if e - NG >= NK:
            assert kc == NK
            if vc == 0:
                stamp(7)
                if not nob2: A("s_barrier")
                stamp(3)
                read_p(0)
            consume_v(vc); vc += 1
        checkpoint(e)
        issue(e)
    while vc < 32:
        consume_v(vc); vc += 1
    stamp(4)
    A("s_mov_b32 exec_lo, 0x00ff00ff"); A("s_mov_b32 exec_hi, 0xff00ff00")
    A(f"ds_write_b128 v10, v[{ACC}:{ACC+3}] offset:{L_ACC}")
    A("s_waitcnt lgkmcnt(0)")
    A("s_mov_b64 exec, -1")
    A("s_barrier")
    stamp(5)
    A(f"v_mov_b32 v19, {L_CNT}")
    A("ds_read_b32 v18, v19 offset:12")
    A("s_waitcnt lgkmcnt(0)")
    A("v_readfirstlane_b32 s63, v18")
    A("s_sub_u32 s63, s63, 1")
    A(f"s_cmp_lt_u32 s63, {NROLE}"); A("s_cbranch_scc1 L_sffn")
    write_stamps()
    A("L_exit:")
    A("s_endpgm")
    A("L_sffn:")
    X = 8
    T = 16
    AV = 40
    MK = 56
    MN = 60
    AS = 64
    DD = 72
    TG = 76
    WQ = 80
    WO = 136
    W3S = 200
    W2F, DQ, AD = 136, 168, 184
    def tr_w13():
        a = T + 12
        A(f"v_lshrrev_b32 v{a+2}, 4, v1"); A(f"v_bfe_u32 v{a+3}, v1, 2, 2")
        A(f"v_lshlrev_b32 v{a}, 9, v{a+2}"); A(f"v_lshl_add_u32 v{a}, v{a+3}, 11, v{a}")
        A(f"v_and_b32 v{a+2}, 1, v{a+2}"); A(f"v_lshl_add_u32 v{a+3}, v{a+2}, 2, v{a+3}")
        A(f"v_and_b32 v{a+2}, 2, v1"); A(f"v_lshl_add_u32 v{a+3}, v{a+2}, 2, v{a+3}")
        A(f"v_add_u32 v{a+3}, s62, v{a+3}"); A(f"v_and_b32 v{a+3}, 15, v{a+3}")
        A(f"v_lshl_add_u32 v{a}, v{a+3}, 4, v{a}")
        A(f"v_and_b32 v{a+2}, 1, v1"); A(f"v_lshl_add_u32 v{a}, v{a+2}, 3, v{a}")
        A(f"v_add_u32 v{a}, {L_W}, v{a}"); A(f"v_add_u32 v{a+1}, 0x10000, v{a}")
        for t in range(14):
            for h in range(2):
                A(f"ds_read_b64_tr_b16 v[{WQ+4*t+2*h}:{WQ+4*t+2*h+1}], v{a+(t>>3)} offset:{(t&7)*8192+h*256}")
    tr_w13()
    A("s_waitcnt lgkmcnt(0)")
    A("s_barrier")
    A("s_branch L_ffn")

    A("L_service:")
    svc_mode[0] = True
    common()
    A("s_sub_u32 s3, s3, 4")
    A("s_mul_i32 s9, s3, 896"); srd(40, 16, "s9", 896)
    A("v_lshrrev_b32 v5, 5, v1"); A("v_mul_u32_u24 v5, 14, v5"); A("v_and_b32 v6, 3, v1"); A("v_lshl_add_u32 v5, v6, 2, v5")
    A("v_bfe_u32 v6, v1, 2, 2"); A("v_lshlrev_b32 v6, 1, v6"); A("v_bfe_u32 v7, v1, 4, 1"); A("v_add_u32 v6, v6, v7")
    A("v_lshl_add_u32 v7, v5, 3, v6"); A("v_lshlrev_b32 v7, 1, v7")
    for u in range(2):
        for e in range(4): A(f"buffer_load_ushort v{X+4*u+e}, v7, s[40:43], 0 offen offset:{u*448+e*16}")
    A("v_mov_b32 v2, 0"); A("s_lshl_b32 s50, s6, 7")
    A(f"buffer_load_dword v{TG}, v2, s[12:15], s50 offen sc1")
    A("s_lshl_b32 s9, s6, 9"); A("s_lshl_b32 s10, s4, 7"); A("s_add_u32 s9, s9, s10")
    A(f"s_mul_i32 s10, s5, {112*8192}"); A("s_add_u32 s9, s9, s10")
    srd(44, 22, "s9", 111*8192 + 128)
    A(f"v_lshlrev_b32 v{T}, 13, v3"); A(f"v_lshl_add_u32 v{T}, v4, 4, v{T}")
    A("s_lshl_b32 s9, s3, 16"); A(f"v_add_u32 v{T}, s9, v{T}")
    for t in range(4):
        if t: A(f"v_add_u32 v{T}, {4*65536}, v{T}")
        A(f"buffer_load_dwordx4 v[{WQ+4*t}:{WQ+4*t+3}], v{T}, s[44:47], 0 offen {qpol}")
    stamp(3, True)
    A("v_lshlrev_b32 v78, 8, v6"); A("v_lshrrev_b32 v5, 5, v1"); A("v_lshl_add_u32 v78, v5, 6, v78")
    A("v_and_b32 v5, 3, v1"); A("v_lshl_add_u32 v78, v5, 4, v78")
    A("s_lshl_b32 s10, s3, 11"); A("v_add_u32 v78, s10, v78")
    A("s_lshl_b32 s9, s5, 6"); A("s_add_u32 s9, s9, s10"); A("v_lshlrev_b32 v79, 8, v3"); A("v_add_u32 v79, s9, v79")
    for k in range(4): A(f"v_mov_b32 v{T+4+k}, -1")
    for k in range(4): A(f"v_mov_b32 v{T+8+k}, 0")
    A(f"v_lshlrev_b32 v{T+1}, 4, v1")
    A("s_cmp_eq_u32 s3, 0"); A("s_cbranch_scc0 L_f1")
    A("s_lshl_b32 s9, s7, 13"); A("s_lshl_b32 s10, s4, 11"); A("s_add_u32 s9, s9, s10"); A(f"s_add_u32 s9, s9, {WS_SX}")
    if not nofill & 1:
        A(f"buffer_store_dwordx4 v[{T+4}:{T+7}], v{T+1}, s[12:15], s9 offen {spol}")
        A(f"buffer_store_dwordx4 v[{T+4}:{T+7}], v{T+1}, s[12:15], s9 offen offset:1024 {spol}")
    A("s_branch L_f3")
    A("L_f1:")
    A("s_cmp_eq_u32 s3, 1"); A("s_cbranch_scc0 L_f2")
    A("s_lshl_b32 s9, s2, 10"); A(f"s_add_u32 s9, s9, {WS_ZX}")
    if not nofill & 2: A(f"buffer_store_dwordx4 v[{T+4}:{T+7}], v{T+1}, s[12:15], s9 offen {spol}")
    A("s_branch L_f3")
    A("L_f2:")
    A("s_cmp_eq_u32 s3, 2"); A("s_cbranch_scc0 L_f3")
    A("s_cmp_eq_u32 s8, 0"); A("s_cbranch_scc0 L_f3")
    A("s_lshl_b32 s9, s5, 12"); A(f"s_add_u32 s9, s9, {WS_YA}")
    for k in range(3): A(f"buffer_store_dwordx4 v[{T+8}:{T+11}], v{T+1}, s[12:15], s9 offen offset:{1024*k} sc1")
    A("L_f3:")
    A(f"v_and_b32 v{T}, 1, v1"); A(f"v_cmp_eq_u32 vcc, 1, v{T}")
    A(f"v_mov_b32 v{T+2}, 0xffff"); A(f"v_mov_b32 v{T+3}, 0xffff0000"); A(f"v_cndmask_b32 v{T+2}, v{T+2}, v{T+3}, vcc")
    A(f"v_lshrrev_b32 v{T}, 1, v4")
    for k in range(4):
        A(f"v_cmp_eq_u32 vcc, {k}, v{T}"); A(f"v_cndmask_b32 v{MK+k}, 0, v{T+2}, vcc")
    A(f"v_bfe_u32 v{T}, v1, 1, 3")
    for k in range(4):
        A(f"v_cmp_eq_u32 vcc, {2*k}, v{T}"); A(f"v_cndmask_b32 v{MN+k}, 0, v{T+2}, vcc")
    A("s_mov_b32 s52, 0x77777777"); A("s_mov_b32 s53, 0x77777777")

    def wave_sum(v, tmp_s, op="add"):
        A(f"v_{op}_f32_dpp v{v}, v{v}, v{v} quad_perm:[1,0,3,2] row_mask:0xf bank_mask:0xf")
        A(f"v_{op}_f32_dpp v{v}, v{v}, v{v} quad_perm:[2,3,0,1] row_mask:0xf bank_mask:0xf")
        A(f"v_{op}_f32_dpp v{v}, v{v}, v{v} row_half_mirror row_mask:0xf bank_mask:0xf")
        A(f"v_{op}_f32_dpp v{v}, v{v}, v{v} row_mirror row_mask:0xf bank_mask:0xf")
        for i in range(4): A(f"v_readlane_b32 s{tmp_s+i}, v{v}, {16*i}")
        A(f"v_mov_b32 v{v}, s{tmp_s}")
        for i in range(1, 4): A(f"v_{op}_f32 v{v}, s{tmp_s+i}, v{v}")
    def rbf(v, dst=None):
        dst = v if dst is None else dst
        A(f"v_cvt_pk_bf16_f32 v{dst}, v{v}, v{v}"); A(f"v_and_b32 v{dst}, 0xffff0000, v{dst}")
    def layernorm(S, table, ffn=False):
        s = T; d = T + 4
        A(f"v_add_f32 v{s}, v{S}, v{S+1}"); A(f"v_add_f32 v{s+1}, v{S+2}, v{S+3}")
        A(f"v_add_f32 v{s+2}, v{S+4}, v{S+5}"); A(f"v_add_f32 v{s+3}, v{S+6}, v{S+7}")
        A(f"v_add_f32 v{s}, v{s}, v{s+1}"); A(f"v_add_f32 v{s+2}, v{s+2}, v{s+3}"); A(f"v_add_f32 v{s}, v{s}, v{s+2}")
        wave_sum(s, 56)
        A(f"v_mul_f32 v{s}, {1.0/448:.10e}, v{s}")
        for i in range(8): A(f"v_sub_f32 v{d+i}, v{S+i}, v{s}")
        for i in ((4, 5, 6, 7) if ffn else (2, 3, 6, 7)): A(f"v_cndmask_b32 v{d+i}, 0, v{d+i}, s[52:53]")
        A(f"v_mul_f32 v{s+1}, v{d}, v{d}"); A(f"v_mul_f32 v{s+2}, v{d+1}, v{d+1}")
        for i in range(2, 8): A(f"v_fmac_f32 v{s+1+(i&1)}, v{d+i}, v{d+i}")
        A(f"v_add_f32 v{s+1}, v{s+1}, v{s+2}")
        rbf(s)
        wave_sum(s + 1, 56)
        for i in range(8): A(f"v_sub_f32 v{d+i}, v{S+i}, v{s}")
        A(f"v_mul_f32 v{s+1}, {1.0/448:.10e}, v{s+1}")
        rbf(s + 1)
        A(f"v_add_f32 v{s+1}, 0x3727c5ac, v{s+1}")
        rbf(s + 1)
        A(f"v_sqrt_f32 v{s+1}, v{s+1}")
        for i in range(8): rbf(d + i)
        rbf(s + 1)
        A(f"v_rcp_f32 v{s+1}, v{s+1}")
        for i in range(8): A(f"v_mul_f32 v{d+i}, v{d+i}, v{s+1}")
        if ffn:
            for i in range(4): A(f"v_cvt_pk_bf16_f32 v{d+i}, v{d+2*i}, v{d+2*i+1}")
            for u in range(2): A(f"ds_write_b64 v78, v[{d+2*u}:{d+2*u+1}] offset:{table + u*512}")
            return
        for i in range(8): A(f"v_cvt_pk_bf16_f32 v{d+i}, v{d+i}, v{d+i}")
        A(f"ds_write_b128 v78, v[{d}:{d+3}] offset:{table}")
        A(f"ds_write_b128 v78, v[{d+4}:{d+7}] offset:{table+128}")
        A("s_waitcnt lgkmcnt(0)")
        for i in range(4): A(f"ds_read_b128 v[{AV+4*i}:{AV+4*i+3}], v79 offset:{table+16*i}")
    def gemv_k(W, n, lg=False):
        def ands(t):
            for k in range(4): A(f"v_and_b32 v{AS+4*(t&1)+k}, v{AV+t}, v{MK+k}")
        for k in range(4): A(f"v_mov_b32 v{DD+k}, 0")
        ands(0)
        for t in range(n):
            if t + 1 < n: ands(t + 1)
            a = AS + 4 * (t & 1)
            if lg: A(f"s_waitcnt lgkmcnt({n-1-t})")
            A(f"v_mfma_f32_16x16x32_bf16 v[{DD}:{DD+3}], v[{a}:{a+3}], v[{W+4*t}:{W+4*t+3}], v[{DD}:{DD+3}]")
    def gemv_n(W, n, val):
        def ands(t):
            for k in range(4): A(f"v_and_b32_dpp v{AS+4*(t&1)+k}, v{val}, v{MN+k} row_newbcast:{t} row_mask:0xf bank_mask:0xf")
        for k in range(4): A(f"v_mov_b32 v{DD+k}, 0")
        ands(0)
        for t in range(n):
            if t + 1 < n: ands(t + 1)
            a = AS + 4 * (t & 1)
            A(f"v_mfma_f32_16x16x32_bf16 v[{DD}:{DD+3}], v[{a}:{a+3}], v[{W+4*t}:{W+4*t+3}], v[{DD}:{DD+3}]")
    def spin_tail(lbl, sl=1):
        A(f"s_sleep {sl}"); A("s_sub_u32 s54, s54, 1"); A("s_cmp_lg_u32 s54, 0"); A(f"s_cbranch_scc1 {lbl}")

    A("s_waitcnt vmcnt(5)")
    stamp(4, True)
    for i in range(8): A(f"v_lshlrev_b32 v{X+i}, 16, v{X+i}")
    for i in (2, 3, 6, 7): A(f"v_cndmask_b32 v{X+i}, 0, v{X+i}, s[52:53]")
    layernorm(X, L_P)
    acc_addr(5, 6)
    A(f"v_lshlrev_b32 v{T+1}, 4, v1"); A("s_lshl_b32 s9, s3, 10"); A(f"v_add_u32 v{T+2}, s9, v{T+1}")
    A(f"v_mov_b32 v{T+3}, {L_CNT}"); A(f"v_mov_b32 v{T+4}, 1"); A(f"s_mov_b32 s54, {SPIN*8}")
    A("s_waitcnt vmcnt(0)")
    stamp(5, True)
    for t in range(4): A(f"ds_write_b128 v{T+2}, v[{WQ+4*t}:{WQ+4*t+3}] offset:{L_W+4096*t}")
    A("s_waitcnt lgkmcnt(0)")
    A("s_mov_b64 exec, 1")
    A(f"ds_add_u32 v{T+3}, v{T+4}")
    A("s_mov_b64 exec, -1")
    A("L_pollw:")
    A(f"ds_read_b32 v{T}, v{T+3}")
    A("s_waitcnt lgkmcnt(0)")
    A(f"v_readfirstlane_b32 s10, v{T}")
    A("s_cmp_eq_u32 s10, 4"); A("s_cbranch_scc1 L_gotw")
    spin_tail("L_pollw", 1)
    A("L_gotw:")
    stamp(1)
    for t in range(14): A(f"ds_read_b128 v[{WQ+4*t}:{WQ+4*t+3}], v{T+1} offset:{L_W+1024*t}")
    A(f"v_add_u32 v{TG}, 0x9e3779b9, v{TG}")
    A(f"v_lshlrev_b32 v{T+2}, 3, v1")
    A("s_lshl_b32 s9, s6, 15"); A(f"s_add_u32 s9, s9, {WS_QX}")
    A("s_lshl_b32 s51, s5, 13"); A("s_add_u32 s51, s51, s9"); A("s_lshl_b32 s10, s3, 11"); A("s_add_u32 s51, s51, s10")
    A("s_lshl_b32 s10, s3, 13"); A("s_add_u32 s9, s9, s10"); A("s_lshl_b32 s10, s4, 11"); A("s_add_u32 s9, s9, s10")
    A("s_lshl_b32 s10, s5, 9"); A("s_add_u32 s9, s9, s10")
    A(f"v_lshlrev_b32 v{T}, 2, v1"); A("s_lshl_b32 s10, s3, 9"); A(f"v_add_u32 v{T}, s10, v{T}")
    gemv_k(WQ, 14, True)
    A("s_mov_b32 exec_lo, 0x00ff00ff"); A("s_mov_b32 exec_hi, 0xff00ff00")
    A(f"ds_write_b128 v5, v[{DD}:{DD+3}] offset:{L_ACC}")
    A("s_mov_b64 exec, -1")
    A(f"ds_read2st64_b32 v[{T+4}:{T+5}], v{T} offset0:{L_ACC//256} offset1:{L_ACC//256+1}")
    A("s_waitcnt lgkmcnt(0)")
    A(f"v_add_f32 v{T+4}, v{T+4}, v{T+5}")
    A(f"v_mov_b32 v{T+5}, v{TG}")
    if not nofill & 4: A(f"buffer_store_dwordx2 v[{T+4}:{T+5}], v{T+2}, s[12:15], s9 offen {spol}")
    stamp(6, True)
    A("s_cmp_eq_u32 s3, 2"); A("s_cbranch_scc0 L_noflag")
    A("s_cmp_eq_u32 s8, 0"); A("s_cbranch_scc0 L_noflag")
    srd(40, 36, None, 256)
    A("s_lshl_b32 s9, s5, 6"); A(f"v_mov_b32 v{T+6}, 1"); A("s_mov_b64 exec, 1")
    A(f"buffer_store_dword v{T+6}, v2, s[40:43], s9 offen sc1")
    A("s_mov_b64 exec, -1")
    A("L_noflag:")
    A(f"s_mov_b32 s54, {SPIN if not nofill & 4 else 1}")
    if qpre:
        A(f"v_lshlrev_b32 v{T+3}, 9, v1"); A("s_mov_b64 exec, 15")
        A("L_pollq0:")
        A(f"buffer_load_dword v{T+5}, v{T+3}, s[12:15], s51 offen offset:508 sc1")
        A("s_waitcnt vmcnt(0)")
        A(f"v_cmp_eq_u32 vcc, v{T+5}, v{TG}")
        A("s_cmp_eq_u64 vcc, 15"); A("s_cbranch_scc1 L_gotq0")
        spin_tail("L_pollq0", qsl)
        A("L_gotq0:")
        A("s_mov_b64 exec, -1"); A(f"s_mov_b32 s54, {SPIN}")
    A("L_pollq:")
    for k in range(4): A(f"buffer_load_dwordx2 v[{T+4+2*k}:{T+5+2*k}], v{T+2}, s[12:15], s51 offen offset:{512*k} sc1")
    A("s_waitcnt vmcnt(0)")
    for k in range(4): A(f"v_xor_b32 v{T+5+2*k}, v{T+5+2*k}, v{TG}")
    A(f"v_or_b32 v{T+5}, v{T+5}, v{T+7}"); A(f"v_or3_b32 v{T+5}, v{T+5}, v{T+9}, v{T+11}")
    A(f"v_cmp_eq_u32 vcc, 0, v{T+5}")
    A("s_cmp_eq_u64 vcc, -1"); A("s_cbranch_scc1 L_gotq")
    spin_tail("L_pollq", qsl)
    A("L_gotq:")
    A(f"v_add_f32 v{T+4}, v{T+4}, v{T+6}"); A(f"v_add_f32 v{T+8}, v{T+8}, v{T+10}"); A(f"v_add_f32 v{T+4}, v{T+4}, v{T+8}")
    A(f"v_cvt_pk_bf16_f32 v{T+4}, v{T+4}, v{T+4}")
    A(f"v_lshlrev_b32 v{T}, 1, v1"); A("s_lshl_b32 s9, s3, 7"); A(f"v_add_u32 v{T}, s9, v{T}")
    A(f"ds_write_b16 v{T}, v{T+4} offset:{L_Q}")
    stamp(2)
    if touch:
        A("s_lshl_b32 s9, s7, 21"); A("s_lshl_b32 s10, s4, 7"); A("s_add_u32 s10, s10, s9"); A("s_lshl_b32 s11, s3, 19"); A("s_add_u32 s10, s10, s11")
        srd(40, 20, "s10", (512 << 10) - 384)
        A(f"v_mul_u32_u24 v{T+12}, {touch*1024}, v1")
        A(f"buffer_load_dword v{T+13}, v{T+12}, s[40:43], 0 offen nt")
        A("s_lshl_b32 s10, s4, 19"); A("s_add_u32 s10, s10, s9"); A("s_lshl_b32 s11, s3, 17"); A("s_add_u32 s10, s10, s11")
        srd(40, 18, "s10", 128 << 10)
        A(f"buffer_load_dword v{T+14}, v{T+12}, s[40:43], 0 offen nt")
    def tr():
        if TR is not None: A(f"s_waitcnt vmcnt({TR})")
    if TR is not None:
        A("s_waitcnt lgkmcnt(0)")
        if not nob1: A("s_barrier")
    A("s_lshl_b32 s9, s6, 2"); A("s_add_u32 s9, s9, s4"); A(f"s_mul_i32 s9, s9, {64*896}")
    A(f"s_lshl_b32 s10, s3, 8"); A("s_add_u32 s9, s9, s10"); A(f"s_sub_u32 s10, {4096*896}, s9")
    srd(40, 24, "s9", "s10")
    A(f"v_lshrrev_b32 v{T+8}, 4, v1"); A(f"v_mul_u32_u24 v{T+8}, 896, v{T+8}"); A(f"v_and_b32 v{T+9}, 15, v1")
    A(f"v_lshl_add_u32 v{T+8}, v{T+9}, 4, v{T+8}")
    A("s_cmp_eq_u32 s3, 3"); A("s_cselect_b32 s60, 0x00ff00ff, -1"); A("s_mov_b32 s61, s60")
    A("s_mov_b64 exec, s[60:61]")
    for t in range(16 if not skipw else 0):
        A(f"s_mov_b32 s48, {t*3584}")
        tr()
        A(f"buffer_load_dwordx4 v[{WO+4*t}:{WO+4*t+3}], v{T+8}, s[40:43], s48 offen {opol}")
    A("s_mov_b64 exec, -1")
    if TR is None:
        A("s_waitcnt lgkmcnt(0)")
        if not nob1: A("s_barrier")
    stamp(7, True)
    A("s_or_b32 s9, s3, s4"); A("s_or_b32 s9, s9, s5"); A("s_cmp_eq_u32 s9, 0"); A("s_cbranch_scc0 L_nobump")
    A("s_mov_b64 exec, 1")
    A(f"buffer_store_dword v{TG}, v2, s[12:15], s50 offen sc1")
    A("s_mov_b64 exec, -1")
    A("L_nobump:")
    if ft:
        npg = -(-448 * 3584 // (ft * 1024)); per = -(-npg // 32)
        A("s_cmp_lt_u32 s3, 3"); A("s_cbranch_scc0 L_noft")
        A("s_cmp_eq_u32 s3, 1"); A("s_cselect_b32 s40, s30, s28"); A("s_cselect_b32 s41, s31, s29")
        A("s_cmp_eq_u32 s3, 2"); A("s_cselect_b32 s40, s32, s40"); A("s_cselect_b32 s41, s33, s41")
        A(f"s_mov_b32 s42, {448*3584}"); A("s_mov_b32 s43, 0x20000")
        A("s_lshr_b32 s9, s2, 3"); A(f"s_mul_i32 s9, s9, {per}"); A(f"v_add_u32 v{T}, s9, v1"); A(f"v_mul_u32_u24 v{T}, {ft*1024}, v{T}")
        A(f"s_mov_b64 exec, {(1 << per) - 1}")
        A(f"buffer_load_dword v{T+2}, v{T}, s[40:43], 0 offen")
        A("s_mov_b64 exec, -1")
        A("L_noft:")
    srd(40, 36, None, 256)
    A(f"v_and_b32 v{T+1}, 3, v1"); A(f"v_lshlrev_b32 v{T+1}, 6, v{T+1}"); A(f"s_mov_b32 s54, {SPIN}")
    A("L_pollz:")
    A(f"buffer_load_dword v{T}, v{T+1}, s[40:43], 0 offen sc1")
    A("s_waitcnt vmcnt(0)")
    A(f"v_cmp_eq_u32 vcc, 1, v{T}")
    A("s_cmp_eq_u64 vcc, -1"); A("s_cbranch_scc1 L_gotz")
    spin_tail("L_pollz", 8)
    A("L_gotz:")
    w2reg = lambda i: (W3S + 4*i) if i < 14 else (T + 16 + 4*(i-14))
    def role_block():
        A(f"v_mov_b32 v{T+1}, {L_CNT}")
        A("s_cmp_eq_u32 s3, 0"); A("s_cbranch_scc0 L_waitrole")
        srd(40, 36, None, 256)
        A("s_mov_b64 exec, 1"); A(f"v_mov_b32 v{T}, 1")
        A(f"buffer_atomic_add v{T}, v2, s[40:43], 0 offen offset:{DBG_TICKET} sc0 sc1")
        A("s_waitcnt vmcnt(0)")
        A(f"v_add_u32 v{T}, 1, v{T}")
        A(f"ds_write_b32 v{T+1}, v{T} offset:12")
        A("s_mov_b64 exec, -1")
        A("L_waitrole:")
        A(f"s_mov_b32 s54, {SPIN*8}")
        A("L_pollr:")
        A(f"ds_read_b32 v{T}, v{T+1} offset:12")
        A("s_waitcnt lgkmcnt(0)")
        A(f"v_readfirstlane_b32 s63, v{T}")
        A("s_cmp_lg_u32 s63, 0"); A("s_cbranch_scc1 L_gotr")
        spin_tail("L_pollr", 2)
        A("L_gotr:")
        A("s_sub_u32 s63, s63, 1")
        A(f"s_cmp_lt_u32 s63, {NROLE}"); A("s_cbranch_scc0 L_norole")
        A("s_mul_i32 s9, s3, 896"); srd(40, 16, "s9", 896)
        A(f"v_bfe_u32 v{T}, v1, 2, 2"); A(f"v_lshlrev_b32 v{T}, 1, v{T}"); A(f"v_bfe_u32 v{T+1}, v1, 4, 1"); A(f"v_add_u32 v{T}, v{T}, v{T+1}")
        A(f"v_lshrrev_b32 v{T+1}, 5, v1"); A(f"v_and_b32 v{T+2}, 3, v1"); A(f"v_lshl_add_u32 v{T+1}, v{T+1}, 2, v{T+2}")
        A(f"v_lshlrev_b32 v{T+2}, 6, v{T+1}"); A(f"v_lshl_add_u32 v{T+2}, v{T}, 1, v{T+2}")
        for u in range(2):
            for e in range(4): A(f"buffer_load_ushort v{X+4*u+e}, v{T+2}, s[40:43], 0 offen offset:{u*512+e*16}")
        A(f"v_lshlrev_b32 v78, 6, v{T+1}"); A(f"v_lshl_add_u32 v78, v{T}, 3, v78"); A("s_mul_i32 s9, s3, 1040"); A("v_add_u32 v78, s9, v78")
        A("s_lshl_b32 s9, s63, 7"); A(f"s_mul_i32 s10, s3, {8*3584}"); A("s_add_u32 s9, s9, s10"); A(f"s_sub_u32 s10, {448*3584}, s9")
        srd(40, 28, "s9", "s10"); srd(44, 30, "s9", "s10")
        A(f"v_mul_u32_u24 v{T+8}, 3584, v3"); A(f"v_lshl_add_u32 v{T+8}, v4, 4, v{T+8}")
        for dst, sr in ((WQ, 40), (W3S, 44)):
            for t in range(0 if skipf else 14):
                A(f"s_mov_b32 s48, {t*32*3584}")
                if tw < 63: A(f"s_waitcnt vmcnt({tw})")
                A(f"buffer_load_dwordx4 v[{dst+4*t}:{dst+4*t+3}], v{T+8}, s[{sr}:{sr+3}], s48 offen {fpol}")
        A(f"v_bfe_u32 v{T}, v1, 4, 1"); A(f"v_lshl_add_u32 v{T}, v{T}, 2, v4"); A(f"v_add_u32 v{T}, s3, v{T}")
        A("s_lshl_b32 s9, s3, 11"); A(f"s_add_u32 s9, s9, {L_W}")
        A(f"v_lshlrev_b32 v{T+1}, 8, v3"); A(f"v_add_u32 v{T+1}, s9, v{T+1}")
        A(f"v_lshl_add_u32 v{T+2}, v{T}, 4, v{T+1}"); A(f"v_add_u32 v{T+3}, 0x10000, v{T+2}")
        A(f"v_xor_b32 v{T+4}, 0x80, v{T+2}"); A(f"v_xor_b32 v{T+5}, 0x80, v{T+3}")
        A(f"s_mul_i32 s9, s63, {64*896}"); A(f"s_mul_i32 s10, s3, {16*896}"); A("s_add_u32 s9, s9, s10")
        srd(40, 32, "s9", 16*896)
        A(f"v_lshlrev_b32 v{T+8}, 4, v1")
        for m, src in ((0, WQ), (1, W3S)):
            for t in range(14):
                A(f"s_waitcnt vmcnt({27-14*m-t})")
                A(f"ds_write_b128 v{T+2+2*m+(t>>3)}, v[{src+4*t}:{src+4*t+3}] offset:{(t&7)*8192}")
        A("s_waitcnt lgkmcnt(0)")
        A(f"v_mov_b32 v{T}, {L_CNT}"); A(f"v_mov_b32 v{T+1}, 1"); A("s_mov_b64 exec, 1")
        A(f"ds_add_u32 v{T}, v{T+1} offset:48"); A("s_mov_b64 exec, -1")
        A("s_mov_b32 exec_hi, 0x00ffffff")
        for i in range(0 if skipf else 16):
            A(f"s_mov_b32 s48, {(i>>2)*3584}")
            if tw < 63: A(f"s_waitcnt vmcnt({tw})")
            A(f"buffer_load_dwordx4 v[{w2reg(i)}:{w2reg(i)+3}], v{T+8}, s[40:43], s48 offen offset:{(i&3)*896} {fpol}")
        A("s_mov_b64 exec, -1")
        A(f"s_mov_b32 s54, {SPIN*8}")
        A("L_pollf:")
        A(f"ds_read_b32 v{T+1}, v{T} offset:48")
        A("s_waitcnt lgkmcnt(0)")
        A(f"v_readfirstlane_b32 s10, v{T+1}")
        A("s_cmp_eq_u32 s10, 4"); A("s_cbranch_scc1 L_gotf")
        spin_tail("L_pollf", 2)
        A("L_gotf:")
        tr_w13()
        for i in range(8): A(f"v_lshlrev_b32 v{X+i}, 16, v{X+i}")
        A(f"s_mul_i32 s9, s3, {16*928}"); A(f"s_add_u32 s9, s9, {L_W}")
        A(f"v_lshlrev_b32 v79, 4, v1"); A(f"v_add_u32 v79, s9, v79")
        A("L_norole:")
    if te is not None:
        A(f"v_mov_b32 v{T+1}, {L_CNT}"); A(f"s_mov_b32 s54, {SPIN*8}")
        A("L_pollt:")
        A(f"ds_read_b32 v{T}, v{T+1} offset:56")
        A("s_waitcnt lgkmcnt(0)")
        A(f"v_readfirstlane_b32 s10, v{T}")
        A("s_cmp_eq_u32 s10, 4"); A("s_cbranch_scc1 L_gott")
        spin_tail("L_pollt", 2)
        A("L_gott:")
        role_block()
    A(f"v_mov_b32 v{T+1}, {L_CNT}"); A(f"s_mov_b32 s54, {SPIN*8}")
    A("L_pollk:")
    A(f"ds_read_b32 v{T}, v{T+1} offset:4")
    A("s_waitcnt lgkmcnt(0)")
    A(f"v_readfirstlane_b32 s10, v{T}")
    A("s_cmp_eq_u32 s10, 4"); A("s_cbranch_scc1 L_gotk")
    spin_tail("L_pollk", 2)
    A("L_gotk:")
    stamp(3)
    A("s_lshl_b32 s9, s7, 13"); A("s_lshl_b32 s10, s3, 11"); A("s_add_u32 s9, s9, s10"); A(f"s_add_u32 s9, s9, {WS_SX}")
    A(f"v_lshlrev_b32 v{T+1}, 4, v1"); A(f"s_mov_b32 s54, {SPIN}")
    SW = T + 8
    A("L_polls:")
    A(f"buffer_load_dwordx4 v[{SW}:{SW+3}], v{T+1}, s[12:15], s9 offen sc1")
    A(f"buffer_load_dwordx4 v[{SW+4}:{SW+7}], v{T+1}, s[12:15], s9 offen offset:1024 sc1")
    A("s_waitcnt vmcnt(0)")
    if xs:
        for i in range(4): A(f"v_pk_max_u16 v{T+2+i}, v{SW+i}, v{SW+4+i}")
        A(f"v_pk_max_u16 v{T+2}, v{T+2}, v{T+3}"); A(f"v_pk_max_u16 v{T+4}, v{T+4}, v{T+5}"); A(f"v_pk_max_u16 v{T}, v{T+2}, v{T+4}")
        A(f"v_lshlrev_b32 v{T+2}, 16, v{T}"); A(f"v_max_u32 v{T}, v{T}, v{T+2}")
        A(f"v_cmp_le_u32 vcc, 0xffff0000, v{T}")
    else:
        A(f"v_max_u32 v{T}, v{SW}, v{SW+1}")
        A(f"v_max3_u32 v{T}, v{T}, v{SW+2}, v{SW+3}"); A(f"v_max3_u32 v{T}, v{T}, v{SW+4}, v{SW+5}"); A(f"v_max3_u32 v{T}, v{T}, v{SW+6}, v{SW+7}")
        A(f"v_cmp_eq_u32 vcc, -1, v{T}")
    A("s_cmp_eq_u64 vcc, 0"); A("s_cbranch_scc1 L_gots")
    spin_tail("L_polls", ssl)
    A("L_gots:")
    stamp(4)
    for i in range(8):
        A(f"v_lshlrev_b32 v{AV+i}, 16, v{SW+i}"); A(f"v_and_b32 v{AV+8+i}, 0xffff0000, v{SW+i}")
    A(f"v_max_f32 v{T}, v{AV}, v{AV+1}")
    for i in range(2, 16, 2): A(f"v_max3_f32 v{T}, v{T}, v{AV+i}, v{AV+i+1}")
    wave_sum(T, 56, "max")
    CE = 1.4426950408889634 / 16
    A(f"s_mov_b32 s55, {CE:.10e}".replace(f"{CE:.10e}", hex(f2u(CE))))
    for i in range(16): A(f"v_sub_f32 v{AV+i}, v{AV+i}, v{T}")
    for i in range(16): A(f"v_mul_f32 v{AV+i}, s55, v{AV+i}")
    for i in range(16): A(f"v_exp_f32 v{AV+i}, v{AV+i}")
    A(f"v_add_f32 v{T+1}, v{AV}, v{AV+1}"); A(f"v_add_f32 v{T+2}, v{AV+2}, v{AV+3}")
    for i in range(4, 16): A(f"v_add_f32 v{T+1+(i&1)}, v{T+1+(i&1)}, v{AV+i}")
    A(f"v_add_f32 v{T+1}, v{T+1}, v{T+2}")
    wave_sum(T + 1, 56)
    A("s_lshl_b32 s9, s3, 3"); A(f"v_mov_b32 v{T+2}, s9"); A("s_mov_b64 exec, 1")
    A(f"ds_write_b64 v{T+2}, v[{T}:{T+1}] offset:{L_CNT+16}")
    A(f"v_mov_b32 v{T+2}, {L_CNT}"); A(f"v_mov_b32 v{T+3}, 1")
    A("s_waitcnt lgkmcnt(0)")
    A(f"ds_add_u32 v{T+2}, v{T+3} offset:8")
    A("s_mov_b64 exec, -1")
    A(f"v_mov_b32 v{T+2}, {L_CNT}"); A(f"s_mov_b32 s54, {SPIN*8}")
    A("L_pollm:")
    A(f"ds_read_b32 v{T+3}, v{T+2} offset:8")
    A("s_waitcnt lgkmcnt(0)")
    A(f"v_readfirstlane_b32 s10, v{T+3}")
    A("s_cmp_eq_u32 s10, 4"); A("s_cbranch_scc1 L_gotm")
    spin_tail("L_pollm", 1)
    A("L_gotm:")
    A(f"ds_read_b128 v[{SW}:{SW+3}], v{T+2} offset:16"); A(f"ds_read_b128 v[{SW+4}:{SW+7}], v{T+2} offset:32")
    A("s_waitcnt lgkmcnt(0)")
    A(f"v_max_f32 v{T+3}, v{SW}, v{SW+2}"); A(f"v_max3_f32 v{T+3}, v{T+3}, v{SW+4}, v{SW+6}")
    for i in range(4): A(f"v_sub_f32 v{SW+2*i}, v{SW+2*i}, v{T+3}")
    A(f"v_sub_f32 v{T}, v{T}, v{T+3}")
    for i in range(4): A(f"v_mul_f32 v{SW+2*i}, s55, v{SW+2*i}")
    A(f"v_mul_f32 v{T}, s55, v{T}")
    for i in range(4): A(f"v_exp_f32 v{SW+2*i}, v{SW+2*i}")
    A(f"v_exp_f32 v{T}, v{T}")
    A(f"v_mul_f32 v{T+1}, v{SW}, v{SW+1}")
    for i in range(1, 4): A(f"v_fmac_f32 v{T+1}, v{SW+2*i}, v{SW+2*i+1}")
    A(f"v_rcp_f32 v{T+1}, v{T+1}")
    A(f"v_mul_f32 v{T}, v{T}, v{T+1}")
    A(f"v_bfe_u32 v{T+2}, v1, 4, 1"); A(f"v_lshlrev_b32 v{T+2}, 11, v{T+2}")
    A(f"v_and_b32 v{T+3}, 1, v1"); A(f"v_lshl_add_u32 v{T+2}, v{T+3}, 9, v{T+2}")
    A(f"v_bfe_u32 v{T+3}, v1, 1, 3"); A(f"v_lshl_add_u32 v{T+2}, v{T+3}, 4, v{T+2}")
    A(f"v_lshrrev_b32 v{T+3}, 5, v1"); A(f"v_lshl_add_u32 v{T+2}, v{T+3}, 2, v{T+2}")
    A("s_lshl_b32 s9, s3, 12"); A(f"v_add_u32 v{T+2}, s9, v{T+2}")
    for i in range(16): A(f"v_mul_f32 v{AV+i}, v{AV+i}, v{T}")
    for i in range(16): A(f"v_cvt_pk_bf16_f32 v{AV+i}, v{AV+i}, v{AV+i}")
    for i in range(16):
        lohi = i >> 3; u = (i >> 2) & 1; e = i & 3
        A(f"ds_write_b32 v{T+2}, v{AV+i} offset:{L_P + e*128 + lohi*1024 + u*8}")
    A("s_waitcnt lgkmcnt(0)")
    if not nob2: A("s_barrier")
    stamp(5)
    if te is None: role_block()
    A(f"v_and_b32 v{T+1}, 15, v1"); A(f"v_lshrrev_b32 v{T+2}, 4, v1")
    A(f"v_lshlrev_b32 v5, 4, v{T+1}"); A(f"v_lshl_add_u32 v5, v{T+2}, 2, v5")
    A("v_lshlrev_b32 v6, 2, v1")
    A("v_lshlrev_b32 v7, 7, v1")
    A(f"v_mov_b32 v{T+2}, 1")
    A("s_lshl_b32 s50, s5, 12"); A(f"s_add_u32 s50, s50, {WS_YA}")
    A("s_lshl_b32 s9, s3, 9"); A("s_add_u32 s51, s50, s9")
    A("s_waitcnt vmcnt(0) lgkmcnt(0)")
    A("s_barrier")
    stamp(6)
    if dbl == 2: A("s_memrealtime s[80:81]")
    acc_sum(T + 4, 5)
    A(f"v_cvt_pk_bf16_f32 v{T}, v{T+4}, v{T+4}")
    gemv_n(WO, 16, T)
    A("s_mov_b64 exec, s[60:61]")
    if not skipy & 1:
        A(f"buffer_atomic_add_f32 v{DD}, v6, s[12:15], s51 offen sc1")
        A(f"buffer_atomic_add_f32 v{DD+1}, v6, s[12:15], s51 offen offset:256 sc1")
    A(f"s_cmp_lt_u32 s63, {NROLE}"); A("s_cbranch_scc0 L_cnt")
    A("s_barrier")
    A("s_mov_b32 exec_lo, -1"); A("s_mov_b32 exec_hi, 0x00ffffff")
    for i in range(16): A(f"ds_write_b128 v79, v[{w2reg(i)}:{w2reg(i)+3}] offset:{i*928}")
    A("L_cnt:")
    A(f"s_mov_b64 exec, {(1<<R)-1}")
    A("s_waitcnt vmcnt(0)")
    if not skipy & 2: A(f"buffer_atomic_add v{T+2}, v7, s[12:15], s50 offen offset:2048 sc1")
    A("s_mov_b64 exec, -1")
    A("s_cbranch_scc0 L_done")
    A("L_ffn:")
    H = T + 16
    A_HN, A_ACTW, A_ACTR, A_ST, A_L16, A_H, A_OUT, A_W2 = range(AD, AD + 8)
    A(f"v_lshrrev_b32 v{T+2}, 4, v1"); A(f"v_bfe_u32 v{T+3}, v1, 2, 2"); A(f"v_and_b32 v{T+4}, 3, v1")
    A(f"v_mul_u32_u24 v{A_HN}, 1040, v{T+4}"); A(f"v_lshl_add_u32 v{A_HN}, v{T+3}, 6, v{A_HN}"); A(f"v_lshl_add_u32 v{A_HN}, v{T+2}, 4, v{A_HN}")
    A(f"v_mul_u32_u24 v{A_ACTW}, 144, v{T+4}"); A(f"v_lshl_add_u32 v{A_ACTR}, v{T+2}, 4, v{A_ACTW}")
    A(f"v_and_b32 v{T+5}, 1, v{T+2}"); A(f"v_lshl_add_u32 v{A_ACTW}, v{T+5}, 3, v{A_ACTW}")
    A(f"v_lshrrev_b32 v{T+5}, 5, v1"); A(f"v_lshl_add_u32 v{A_ACTW}, v{T+5}, 2, v{A_ACTW}")
    A("s_lshl_b32 s9, s62, 4"); A(f"v_add_u32 v{A_ACTW}, s9, v{A_ACTW}")
    A(f"v_lshlrev_b32 v{A_ST}, 12, v3"); A(f"v_lshl_add_u32 v{A_ST}, v4, 4, v{A_ST}")
    A(f"v_lshlrev_b32 v{A_L16}, 4, v1")
    A("s_lshl_b32 s68, s62, 15"); A("s_lshl_b32 s9, s63, 7"); A("s_add_u32 s68, s68, s9"); A(f"s_add_u32 s68, s68, {WS_ZX}")
    A(f"v_lshl_add_u32 v{A_W2}, v{T+2}, 3, v{T+3}"); A(f"v_mul_u32_u24 v{A_W2}, 928, v{A_W2}"); A(f"v_lshl_add_u32 v{A_W2}, v{T+4}, 3, v{A_W2}")
    A("s_min_u32 s9, s62, 6"); A("s_lshl_b32 s9, s9, 7"); A(f"s_add_u32 s9, s9, {L_W}"); A(f"v_add_u32 v{A_W2}, s9, v{A_W2}")
    A("s_lshl_b32 s9, s63, 1"); A("s_and_b32 s10, s62, 1"); A("s_add_u32 s9, s9, s10")
    A("s_lshl_b32 s69, s9, 12"); A(f"s_add_u32 s69, s69, {WS_ZX}")
    A("s_lshr_b32 s64, s9, 3"); A("s_lshl_b32 s64, s64, 6"); A("s_lshl_b32 s10, s10, 5"); A("s_add_u32 s64, s64, s10")
    A("s_bfe_u32 s10, s9, 0x20001"); A("s_lshl_b32 s10, s10, 2"); A("s_add_u32 s64, s64, s10")
    A(f"v_and_b32 v{T+5}, 4, v1"); A(f"v_lshlrev_b32 v{T+5}, 2, v{T+5}"); A(f"v_add_u32 v{T+5}, s64, v{T+5}")
    A(f"v_mul_u32_u24 v{A_OUT}, 896, v{T+4}"); A(f"v_lshl_add_u32 v{A_OUT}, v{T+5}, 1, v{A_OUT}")
    A(f"v_lshrrev_b32 v{A_H}, 7, v{T+5}"); A(f"v_lshlrev_b32 v{A_H}, 9, v{A_H}"); A(f"v_lshl_add_u32 v{A_H}, v{T+4}, 11, v{A_H}")
    A(f"v_bfe_u32 v{T+6}, v{T+5}, 3, 4"); A(f"v_lshl_add_u32 v{A_H}, v{T+6}, 2, v{A_H}")
    A(f"v_and_b32 v{T+6}, 4, v{T+5}"); A(f"v_lshl_add_u32 v{A_H}, v{T+6}, 5, v{A_H}")
    srd(44, 34, None, 3584)
    for q in range(1, 4):
        A(f"s_mov_b32 s{70+2*q}, {0x000f000f << (4*q):#x}"); A(f"s_mov_b32 s{71+2*q}, {0x000f000f << (4*q):#x}")
    A("s_waitcnt lgkmcnt(0)")
    A("s_barrier")
    for q in range(4):
        for sk in range(2):
            for h in range(2):
                r = W2F + 8*q + 4*sk + 2*h
                A(f"ds_read_b64_tr_b16 v[{r}:{r+1}], v{A_W2} offset:{(32*sk+4*h)*928 + 32*q}")
    for k in range(16): A(f"v_mov_b32 v{DQ+k}, 0")
    A("s_cmp_lt_u32 s62, 4"); A("s_cbranch_scc1 L_f1wait")
    A("s_mov_b32 s52, -1"); A("s_mov_b32 s53, 0x33333333")
    A("s_lshl_b32 s50, s3, 12"); A(f"s_add_u32 s50, s50, {WS_YA}")
    A(f"s_and_b32 s9, s63, {R-1}"); A("s_lshl_b32 s9, s9, 7"); A("s_add_u32 s9, s9, s50"); A(f"s_mov_b32 s54, {SPIN if not skipy & 2 else 1}")
    A("s_lshl_b32 s10, s3, 11"); A(f"v_add_u32 v79, s10, v{A_L16}")
    ldy = lambda k: A(f"buffer_load_dword v{T+k}, v2, s[12:15], s9 offen offset:2048 sc1")
    if pp:
        ldy(0); A("s_sleep 1"); ldy(1); A("s_sleep 1")
        A("L_polly:")
        for k in range(3):
            ldy((k + 2) % 3)
            A("s_waitcnt vmcnt(2)")
            A(f"v_readfirstlane_b32 s10, v{T+k}")
            A("s_cmp_eq_u32 s10, 256"); A("s_cbranch_scc1 L_goty")
        A("s_sub_u32 s54, s54, 1"); A("s_cmp_lg_u32 s54, 0"); A("s_cbranch_scc1 L_polly")
    else:
        A("L_polly:")
        ldy(0)
        A("s_waitcnt vmcnt(0)")
        A(f"v_readfirstlane_b32 s10, v{T}")
        A("s_cmp_eq_u32 s10, 256"); A("s_cbranch_scc1 L_goty")
        spin_tail("L_polly", 1)
    A("L_goty:")
    if fst: stamp(5)
    A(f"buffer_load_dwordx4 v[{H}:{H+3}], v{A_L16}, s[12:15], s50 offen sc1")
    A(f"buffer_load_dwordx4 v[{H+4}:{H+7}], v{A_L16}, s[12:15], s50 offen offset:1024 sc1")
    A("s_waitcnt vmcnt(0)")
    stamp(7)
    for i in range(8): rbf(H + i)
    for i in range(8): A(f"v_add_f32 v{H+i}, v{H+i}, v{X+i}")
    for i in range(8): rbf(H + i)
    A(f"ds_write_b128 v79, v[{H}:{H+3}] offset:{L_H}")
    A(f"ds_write_b128 v79, v[{H+4}:{H+7}] offset:{L_H+1024}")
    layernorm(H, L_HN, True)
    A("L_f1wait:")
    A("s_waitcnt lgkmcnt(0)")
    if fst: stamp(2)
    A("s_barrier")
    if fst: stamp(3)
    for i in range(4): A(f"ds_read_b128 v[{AV+4*i}:{AV+4*i+3}], v{A_HN} offset:{L_HN+256*i}")
    for r in range(4): A(f"ds_read_b32 v{H+r}, v{A_H} offset:{L_H+64*(r>>1)+256*(r&1)}")
    for t in range(14):
        if t % 4 == 0: A(f"s_waitcnt lgkmcnt({7-t//4})")
        d = DQ + 4*(t&3); b = AV + 4*(t>>2)
        A(f"v_mfma_f32_16x16x32_bf16 v[{d}:{d+3}], v[{WQ+4*t}:{WQ+4*t+3}], v[{b}:{b+3}], v[{d}:{d+3}]")
    for r in range(4): A(f"v_add_f32_dpp v{DQ+8+r}, v{DQ+12+r}, v{DQ+8+r} row_shl:4 row_mask:0xf bank_mask:0xf")
    for r in range(4): A(f"v_add_f32_dpp v{DQ+r}, v{DQ+4+r}, v{DQ+r} row_shl:4 row_mask:0xf bank_mask:0xf")
    for r in range(4): A(f"v_add_f32_dpp v{T+r}, v{DQ+8+r}, v{DQ+r} row_shl:8 row_mask:0xf bank_mask:0xf")
    for r in range(4): rbf(T + r)
    A(f"v_permlane32_swap_b32 v{T}, v{T+2}"); A(f"v_permlane32_swap_b32 v{T+1}, v{T+3}")
    for i in range(2): A(f"v_mul_f32 v{T+4+i}, {hex(f2u(-1.4426950408889634))}, v{T+i}")
    for i in range(2): A(f"v_exp_f32 v{T+4+i}, v{T+4+i}")
    for i in range(2): A(f"v_add_f32 v{T+4+i}, 1.0, v{T+4+i}")
    for i in range(2): A(f"v_rcp_f32 v{T+4+i}, v{T+4+i}")
    for i in range(2): A(f"v_mul_f32 v{T+4+i}, v{T+4+i}, v{T+i}")
    for i in range(2): rbf(T + 4 + i)
    for i in range(2): A(f"v_mul_f32 v{T+4+i}, v{T+4+i}, v{T+2+i}")
    A(f"v_cvt_pk_bf16_f32 v{T}, v{T+4}, v{T+5}")
    A("s_mov_b32 exec_lo, 0x000f000f"); A("s_mov_b32 exec_hi, 0x000f000f")
    A(f"ds_write_b32 v{A_ACTW}, v{T} offset:{L_ACT}")
    A("s_mov_b64 exec, -1")
    RD = 64
    NS = 3 if pp else 1
    for j in range(NS):
        for k in range(4): A(f"v_mov_b32 v{RD+16*j+12+k}, 0")
    A(f"s_mov_b32 s54, {SPIN}")
    A("s_waitcnt lgkmcnt(0)")
    A("s_barrier")
    if fst: stamp(4)
    A("s_cmp_eq_u32 s62, 7"); A("s_cbranch_scc1 L_pollo")
    for sk in range(2): A(f"ds_read_b128 v[{AV+4*sk}:{AV+4*sk+3}], v{A_ACTR} offset:{L_ACT+64*sk}")
    for sk in range(2):
        A(f"s_waitcnt lgkmcnt({1-sk})")
        for q in range(4):
            d = DQ + 4*q; a = W2F + 8*q + 4*sk; c = f"v[{d}:{d+3}]" if sk else "0"
            A(f"v_mfma_f32_16x16x32_bf16 v[{d}:{d+3}], v[{a}:{a+3}], v[{AV+4*sk}:{AV+4*sk+3}], {c}")
    for q in range(1, 4):
        for r in range(4): A(f"v_cndmask_b32 v{DQ+r}, v{DQ+r}, v{DQ+4*q+r}, s[{70+2*q}:{71+2*q}]")
    for k in range(4): A(f"v_min_u32 v{DQ+k}, -2, v{DQ+k}")
    A(f"buffer_store_dwordx4 v[{DQ}:{DQ+3}], v{A_ST}, s[12:15], s68 offen sc1")
    if fst: stamp(0)
    A("s_cmp_eq_u32 s62, 6"); A("s_cbranch_scc0 L_done")
    A("L_pollo:")
    def ldo(j):
        r = RD + 16 * j
        for i in range(3): A(f"buffer_load_dwordx4 v[{r+4*i}:{r+4*i+3}], v{A_L16}, s[12:15], s69 offen offset:{1024*i} sc1")
        A("s_mov_b32 exec_hi, 0")
        A(f"buffer_load_dwordx4 v[{r+12}:{r+15}], v{A_L16}, s[12:15], s69 offen offset:3072 sc1")
        A("s_mov_b32 exec_hi, -1")
    def chk(j):
        r = RD + 16 * j
        A(f"v_max_u32 v{T}, v{r}, v{r+1}")
        for i in range(2, 16, 2): A(f"v_max3_u32 v{T}, v{T}, v{r+i}, v{r+i+1}")
        A(f"v_cmp_eq_u32 vcc, -1, v{T}")
        A("s_cmp_eq_u64 vcc, 0"); A(f"s_cbranch_scc1 L_goto{j}")
    for j in range(NS - 1): ldo(j); A("s_sleep 2")
    A("L_pollo1:")
    for j in range(NS):
        ldo((j + NS - 1) % NS)
        A(f"s_waitcnt vmcnt({4*(NS-1)})")
        chk(j)
    A("s_sub_u32 s54, s54, 1"); A("s_cmp_lg_u32 s54, 0"); A("s_cbranch_scc1 L_pollo1")
    RS = AV
    for j in range(NS):
        r = RD + 16 * j
        A(f"L_goto{j}:")
        for k in range(8): A(f"v_add_f32 v{RS+k}, v{r+k}, v{r+8+k}")
        if j < NS - 1: A("s_branch L_goto")
    A("L_goto:")
    if fst: stamp(6)
    RD = RS
    for k in range(4): A(f"v_add_f32 v{RD+k}, v{RD+k}, v{RD+4+k}")
    for k in range(4): A(f"v_add_f32_dpp v{RD+k}, v{RD+k}, v{RD+k} row_ror:8 row_mask:0xf bank_mask:0xf")
    for k in range(4): A(f"v_mov_b32 v{RD+4+k}, v{RD+k}")
    for k in range(4): A(f"v_permlane16_swap_b32 v{RD+k}, v{RD+4+k}")
    for k in range(4): A(f"v_add_f32 v{RD+k}, v{RD+k}, v{RD+4+k}")
    for k in range(4): A(f"v_mov_b32 v{RD+4+k}, v{RD+k}")
    for k in range(4): A(f"v_permlane32_swap_b32 v{RD+k}, v{RD+4+k}")
    for k in range(4): A(f"v_add_f32 v{RD+k}, v{RD+k}, v{RD+4+k}")
    for k in range(4): rbf(RD + k)
    for k in range(4): A(f"v_add_f32 v{RD+k}, v{RD+k}, v{H+k}")
    A(f"v_cvt_pk_bf16_f32 v{T+2}, v{RD}, v{RD+1}"); A(f"v_cvt_pk_bf16_f32 v{T+3}, v{RD+2}, v{RD+3}")
    A("s_mov_b64 exec, 0xff")
    A(f"buffer_store_dwordx2 v[{T+2}:{T+3}], v{A_OUT}, s[44:47], 0 offen")
    A("s_mov_b64 exec, -1")
    A("L_done:")
    if dbl:
        A("s_waitcnt vmcnt(0)")
        A("s_cmp_lt_u32 s62, 4"); A("s_cbranch_scc1 L_exit")
        if dbl == 1: A("s_memrealtime s[80:81]")
        A("s_waitcnt lgkmcnt(0)")
        A("s_sub_u32 s82, s80, s82"); A("s_add_u32 s82, s82, s80")
        if dbl == 2: A("s_add_u32 s82, s82, 1000")
        A("L_dbl:")
        A("s_memrealtime s[80:81]"); A("s_waitcnt lgkmcnt(0)")
        A("s_sub_u32 s80, s80, s82"); A("s_cmp_lt_i32 s80, 0"); A("s_cbranch_scc1 L_dbl")
    if stamps:
        A("s_waitcnt vmcnt(0)")
        A("s_mov_b32 s3, s62")
        A("s_cmp_lt_u32 s62, 4"); A("s_cbranch_scc1 L_st1")
        A("s_memrealtime s[86:87]")
        A("L_st1:")
    write_stamps(True)
    A("s_endpgm")

    body = A.finish()
    out = HDR + f"; @launch grid=(256,1,1) block=(512,1,1) lds={LDS_SIZE}\n"
    out += f'.amdgcn_target "amdgcn-amd-amdhsa--gfx950"\n.text\n.globl {NAME}\n.p2align 8\n.type {NAME},@function\n'
    out += body
    out += f'''.section .rodata,"a"
.p2align 6
.amdhsa_kernel {NAME}
  .amdhsa_next_free_vgpr 256
  .amdhsa_next_free_sgpr 102
  .amdhsa_accum_offset 256
  .amdhsa_group_segment_fixed_size 0
  .amdhsa_kernarg_size 96
  .amdhsa_user_sgpr_count 2
  .amdhsa_user_sgpr_kernarg_segment_ptr 1
  .amdhsa_system_sgpr_workgroup_id_x 1
.end_amdhsa_kernel
'''
    return out

import struct
def f2u(f): return struct.unpack("<I", struct.pack("<f", f))[0]

if __name__ == "__main__":
    kw = eval("dict(" + (sys.argv[2] if len(sys.argv) > 2 else "") + ")")
    open(sys.argv[1], "w").write(gen(**kw))
```
